```python
import torch

def _softmax(x, axis=-1):
    return torch.softmax(x, dim=axis)

def _gelu(x):
    return torch.nn.functional.gelu(x, approximate='tanh')

def _silu(x):
    return torch.nn.functional.silu(x)

def _sigmoid(x):
    return torch.sigmoid(x)

def _layernorm(x, axis=-1, eps=1e-05):
    m = x.mean(dim=axis, keepdim=True)
    v = x.var(dim=axis, keepdim=True, unbiased=False)
    return (x - m) / torch.sqrt(v + eps)

def _scatter_add(tgt, idx, src, axis=0):
    return tgt.clone().index_add_(axis, idx, src)

def _segment_sum(src, seg, n):
    out = torch.zeros((n,) + src.shape[1:], dtype=src.dtype)
    return out.index_add_(0, seg, src)

def _pad(x, pw):
    flat = tuple((v for pair in reversed(pw) for v in pair))
    return torch.nn.functional.pad(x, flat)
kernel_name = 'adaLN_cond__compressed_kv_cla__moe_arch_mod__prompt'

def setup_inputs():

    _w = lambda a: (lambda t: t.to(torch.bfloat16) if t.is_floating_point() else t)(torch.as_tensor(a))

    def _A_setup():
        B, H, Sq, Sk, D, M = (1, 32, 2048, 2048, 128, 512)
        Dc = 4 * D
        return {'x': _w((lambda *s: torch.randn(*s, dtype=torch.bfloat16) * 0.1)(B, Sq, M)), 'c_kv': _w((lambda *s: torch.randn(*s, dtype=torch.bfloat16) * 3.2)(B, Sk, Dc)), 'w_q': _w((lambda *s: torch.randn(*s, dtype=torch.bfloat16) * 0.8)(M, H, D) * M ** (-0.5)), 'w_uk': _w((lambda *s: torch.randn(*s, dtype=torch.bfloat16) * 0.8)(Dc, H, D) * Dc ** (-0.5)), 'w_uv': _w((lambda *s: torch.randn(*s, dtype=torch.bfloat16) * 3.2)(Dc, H, D) * Dc ** (-0.5)), 'w_o': _w((lambda *s: torch.randn(*s, dtype=torch.bfloat16) * 3.2)(H, D, M) * (H * D) ** (-0.5))}
    _A_in = _A_setup()

    def _B_setup():
        B, S, D, F, C = (1, 2048, 512, 1792, 1)
        return {'x': _w((lambda *s: torch.randn(*s, dtype=torch.bfloat16) * 0.1)(B, S, D)), 'w_r': _w((lambda *s: torch.randn(*s, dtype=torch.bfloat16) * 3.2)(D)), 'w_gate': _w((lambda *s: torch.randn(*s, dtype=torch.bfloat16) * 3.2)(D, F)), 'w_up': _w((lambda *s: torch.randn(*s, dtype=torch.bfloat16) * 3.2)(D, F)), 'w_down': _w((lambda *s: torch.randn(*s, dtype=torch.bfloat16) * 3.2)(F, D))}
    _B_in = _B_setup()
    return {'A_x': _A_in['x'], 'A_c_kv': _A_in['c_kv'], 'A_w_q': _A_in['w_q'], 'A_w_uk': _A_in['w_uk'], 'A_w_uv': _A_in['w_uv'], 'A_w_o': _A_in['w_o'], 'B_x': _B_in['x'], 'B_w_r': _B_in['w_r'], 'B_w_gate': _B_in['w_gate'], 'B_w_up': _B_in['w_up'], 'B_w_down': _B_in['w_down'], 'c': _w((lambda *s: torch.randn(*s, dtype=torch.bfloat16) * 0.2)(1, 512) * 8.0), 'w_mod': _w((lambda *s: torch.randn(*s, dtype=torch.bfloat16) * 0.2)(512, 6 * 512) * 512 ** (-0.5) * 8.0)}

def reference(A_x, A_c_kv, A_w_q, A_w_uk, A_w_uv, A_w_o, B_x, B_w_r, B_w_gate, B_w_up, B_w_down, c, w_mod):

    def _A_ref(x, c_kv, w_q, w_uk, w_uv, w_o):
        B, Sq, M = (x.shape[0], x.shape[1], x.shape[2])
        Sk = c_kv.shape[1]
        H, D = (w_q.shape[1], w_q.shape[2])
        q = torch.einsum('bqm,mhd->bhqd', x, w_q)
        k = torch.einsum('bkc,chd->bhkd', c_kv, w_uk)
        v = torch.einsum('bkc,chd->bhkd', c_kv, w_uv)
        scores = torch.einsum('bhqd,bhkd->bhqk', q, k) * D ** (-0.5)
        off = Sk - Sq
        qi = torch.arange(Sq)[:, None]
        kj = torch.arange(Sk)[None, :]
        cmask = kj <= qi + off
        scores = torch.where(cmask[None, None], scores, -1000000000.0)
        p = _softmax(scores, axis=-1)
        ctx = torch.einsum('bhqk,bhkd->bhqd', p, v)
        return torch.einsum('bhqd,hdm->bqm', ctx, w_o)

    def _B_ref(x, w_r, w_gate, w_up, w_down):
        B, S, D = x.shape
        C = 1
        r = x @ w_r
        idx = torch.argsort(-r, axis=-1)[:, :C]
        idx_e = (lambda x, n, axis: torch.repeat_interleave(x, n, dim=axis))(idx.reshape(B, C, 1), D, axis=2)
        x_sel = (lambda x, i, axis: torch.take_along_dim(x, i, dim=axis))(x, idx_e, axis=1)
        g = _silu(x_sel @ w_gate)
        u = x_sel @ w_up
        y = g * u @ w_down
        r_sel = _sigmoid((lambda x, i, axis: torch.take_along_dim(x, i, dim=axis))(r, idx, axis=1))
        y = y * r_sel.reshape(B, C, 1)
        b_off = (torch.arange(B) * S).reshape(B, 1)
        flat_idx = (idx + b_off).reshape(B * C)
        zero = (x * 0.0).reshape(B * S, D)
        upd = _scatter_add(zero, flat_idx, y.reshape(B * C, D), axis=0)
        return x + upd.reshape(B, S, D)
    x = A_x
    mod = (_silu(c) @ w_mod).reshape(c.shape[0], 6, 1, -1)
    sa, ca, ga, sb, cb, gb = (mod[:, 0].clone(), mod[:, 1].clone(), mod[:, 2].clone(), mod[:, 3].clone(), mod[:, 4].clone(), mod[:, 5].clone())
    h = _layernorm(x, axis=-1) * (1 + ca) + sa
    x = x + ga * _A_ref(h, A_c_kv, A_w_q, A_w_uk, A_w_uv, A_w_o)
    h = _layernorm(x, axis=-1) * (1 + cb) + sb
    x = x + gb * _B_ref(h, B_w_r, B_w_gate, B_w_up, B_w_down)
    return x
```

```python
import re

REG_RE = re.compile(r'^(-|abs\()?([vas])(\d+)\)?$')
RNG_RE = re.compile(r'^(-)?([vas])\[(\d+):(\d+)\]$')
TRANS = ('v_exp_f32', 'v_log_f32', 'v_rcp_f32', 'v_rsq_f32', 'v_sqrt_f32', 'v_sin_f32', 'v_cos_f32')


def v(i, n=1):
    return f"v{i}" if n == 1 else f"v[{i}:{i+n-1}]"


def a(i, n=1):
    return f"a{i}" if n == 1 else f"a[{i}:{i+n-1}]"


def s(i, n=1):
    return f"s{i}" if n == 1 else f"s[{i}:{i+n-1}]"


def regs_of(tok):
    tok = tok.strip()
    m = REG_RE.match(tok)
    if m:
        return [m.group(2) + m.group(3)]
    m = RNG_RE.match(tok)
    if m:
        return [m.group(2) + str(i) for i in range(int(m.group(3)), int(m.group(4)) + 1)]
    if tok == 'vcc':
        return ['vcc']
    if tok in ('m0', 'exec', 'scc', 'vcc_lo', 'vcc_hi', 'exec_lo', 'exec_hi'):
        return [tok.split('_')[0]]
    return []


class I:
    __slots__ = ('text', 'op', 'kind', 'rd', 'wr', 'cost', 'srcc', 'auto', 'tag')

    def __init__(self, text, tag=None):
        self.text = text.strip()
        self.tag = tag
        self.auto = False
        self.srcc = []
        t = self.text.split(';')[0].strip()
        if t.endswith(':'):
            self.op, self.kind, self.rd, self.wr, self.cost = 'label', 'label', [], [], 0
            return
        parts = t.split(None, 1)
        op = parts[0]
        self.op = op
        ops = []
        if len(parts) > 1:
            for tok in parts[1].split(','):
                ops.extend(tok.strip().split())
        R = [regs_of(o) for o in ops]
        flat = lambda L: [x for y in L for x in y]
        rd, wr = [], []
        cost = 4
        if op.startswith('v_mfma'):
            kind = 'mfma'
            wr = R[0]
            rd = flat(R[1:4])
            self.srcc = R[3]
            cost = 8
        elif op.startswith('ds_read') or op.startswith('ds_bpermute') or op.startswith('ds_swizzle') or op.startswith('ds_permute'):
            kind = 'dsr'
            wr = R[0]
            rd = flat(R[1:])
        elif op.startswith('ds_'):
            kind = 'dsw'
            rd = flat(R)
            if '_rtn' in op:
                kind = 'dsr'
                wr = R[0]
                rd = flat(R[1:])
        elif op.startswith('buffer_load') or op.startswith('global_load'):
            if 'lds' in ops or '_lds_' in op:
                kind = 'dma'
                rd = flat(R) + ['m0']
            else:
                kind = 'vld'
                wr = R[0]
                rd = flat(R[1:])
        elif op.startswith('buffer_store') or op.startswith('global_store'):
            kind = 'vst'
            rd = flat(R)
        elif op.startswith('buffer_atomic') or op.startswith('global_atomic'):
            rd = flat(R)
            if 'sc0' in ops:
                kind = 'vld'
                wr = R[0]
            else:
                kind = 'vst'
        elif op.startswith('buffer_wbl2') or op.startswith('buffer_inv'):
            kind = 'vst'
        elif op.startswith('s_load') or op.startswith('s_memtime') or op.startswith('s_memrealtime') or op.startswith('s_buffer_load'):
            kind = 'smem'
            wr = R[0]
            rd = flat(R[1:])
        elif op == 's_waitcnt':
            kind = 'wait'
        elif op == 's_barrier':
            kind = 'barrier'
        elif op == 's_nop':
            kind = 'nop'
        elif op.startswith('s_cbranch') or op in ('s_branch', 's_endpgm', 's_setpc_b64'):
            kind = 'branch'
            rd = flat(R)
        elif op.startswith('s_cmp') or op.startswith('s_bitcmp'):
            kind = 'salu'
            rd = flat(R)
            wr = ['scc']
        elif op.startswith('s_'):
            kind = 'salu'
            if op in ('s_setprio', 's_sleep', 's_sendmsg'):
                pass
            else:
                wr = R[0]
                rd = flat(R[1:])
                if op.startswith('s_addk') or op.startswith('s_mulk') or op.startswith('s_cmov'):
                    rd = rd + R[0]
                if 'saveexec' in op:
                    wr = wr + ['exec']
        elif op.startswith('v_'):
            kind = 'valu'
            if op.startswith('v_cmp'):
                wr = R[0]
                rd = flat(R[1:])
                if op.startswith('v_cmpx'):
                    wr = wr + ['exec']
            elif op.startswith('v_permlane') and 'swap' in op:
                wr = R[0] + R[1]
                rd = R[0] + R[1]
            elif op.endswith('_co_u32') or op.startswith('v_add_co') or op.startswith('v_addc_co') or op.startswith('v_sub_co'):
                wr = R[0] + R[1]
                rd = flat(R[2:])
            else:
                wr = R[0]
                rd = flat(R[1:])
                if op.startswith('v_fmac') or op.startswith('v_dot2c') or op.startswith('v_writelane') or 'dpp' in self.text or 'row_' in self.text or 'quad_perm' in self.text:
                    rd = rd + R[0]
            if any(op.startswith(x) for x in TRANS):
                cost = 8
        else:
            raise ValueError("unknown op " + op)
        self.kind, self.rd, self.wr, self.cost = kind, rd, wr, cost

    def is_trans(self):
        return any(self.op.startswith(x) for x in TRANS)

    def states(self):
        if self.kind == 'label':
            return 0
        if self.kind == 'nop':
            return int(self.text.split(';')[0].split()[1]) + 1
        return 1

    def __repr__(self):
        return self.text


class Sec:
    def __init__(self, name):
        self.name = name
        self.ins = []

    def e(self, *texts):
        for t in texts:
            if isinstance(t, I):
                self.ins.append(t)
            else:
                for line in t.split('\n'):
                    if line.strip():
                        self.ins.append(I(line))
        return self

    def ext(self, lst):
        for t in lst:
            self.e(t)
        return self

    def text(self):
        out = []
        for i in self.ins:
            out.append(i.text if i.kind == 'label' else '    ' + i.text)
        return '\n'.join(out)


class F:
    def __init__(self, texts, lo=-1, hi=10**9, stream=None, cost=None):
        if isinstance(texts, (str, I)):
            texts = [texts]
        self.ins = [t if isinstance(t, I) else I(t) for t in texts]
        self.lo, self.hi, self.stream = lo, hi, stream
        self.cost = cost if cost is not None else sum(i.cost for i in self.ins)


def interleave(mfmas, fillers, budget=8.0, start_credit=0.0):
    n = len(mfmas)
    streams = {}
    for k, f in enumerate(fillers):
        streams.setdefault(f.stream if f.stream is not None else ('_', k), []).append(f)
    for st in streams.values():
        for k in range(len(st) - 2, -1, -1):
            st[k].hi = min(st[k].hi, st[k + 1].hi)
        for k in range(1, len(st)):
            st[k].lo = max(st[k].lo, st[k - 1].lo)
        for f in st:
            assert f.lo <= f.hi, (f.ins, f.lo, f.hi)
    total = sum(f.cost for f in fillers)
    rate = max(budget, total / max(n, 1)) if budget is not None else total / max(n, 1)
    out = []
    credit = start_credit
    for g in range(-1, n):
        if g >= 0:
            out.append(mfmas[g] if isinstance(mfmas[g], I) else I(mfmas[g]))
            credit = min(credit, 0.0) + rate if credit < 0 else min(credit, 4.0) + rate
        while True:
            cands = [st for st in streams.values() if st and st[0].lo <= g]
            if not cands:
                break
            st = min(cands, key=lambda q: q[0].hi)
            f = st[0]
            last = g == n - 1
            if f.hi <= g or last or (g >= 0 and credit >= f.cost - 2.0):
                out.extend(f.ins)
                credit -= f.cost
                st.pop(0)
            else:
                fit = [q for q in cands if g >= 0 and credit >= q[0].cost - 2.0]
                if not fit:
                    break
                st = min(fit, key=lambda q: q[0].hi)
                f = st.pop(0)
                out.extend(f.ins)
                credit -= f.cost
    assert all(not st for st in streams.values())
    return out


def grp(text, name, first=False):
    return I(text, tag=('grp', name, first))


def need(name, back=0, lg=None):
    i = I("s_waitcnt vmcnt(63)" + (f" lgkmcnt({lg})" if lg is not None else ""), tag=('need', name, back, lg))
    return i


def resolve_needs(paths):
    best = {}
    for path in paths:
        ops, inst = [], {}
        for sec in path:
            for ins in sec.ins:
                if ins.kind in ('vld', 'vst', 'dma'):
                    key = None
                    if ins.tag and ins.tag[0] == 'grp':
                        if ins.tag[2]:
                            inst[ins.tag[1]] = inst.get(ins.tag[1], -1) + 1
                        key = (ins.tag[1], inst[ins.tag[1]])
                    ops.append(key)
                elif ins.kind == 'wait' and ins.tag and ins.tag[0] == 'need':
                    n = 63
                    names = ins.tag[1] if isinstance(ins.tag[1], (list, tuple)) else [ins.tag[1]]
                    backs = ins.tag[2] if isinstance(ins.tag[2], (list, tuple)) else [ins.tag[2]] * len(names)
                    for nm, bk in zip(names, backs):
                        tgt = inst.get(nm, -1) - bk
                        for k in range(len(ops) - 1, -1, -1):
                            if ops[k] is not None and ops[k][0] == nm and ops[k][1] <= tgt:
                                n = min(n, len(ops) - 1 - k)
                                break
                    best[id(ins)] = (ins, min(n, best.get(id(ins), (None, 63))[1]))
    for ins, n in best.values():
        ins.text = f"s_waitcnt vmcnt({n})" + (f" lgkmcnt({ins.tag[3]})" if ins.tag[3] is not None else "")


def parse_wait(text):
    vm = re.search(r'vmcnt\((\d+)\)', text)
    lg = re.search(r'lgkmcnt\((\d+)\)', text)
    return (int(vm.group(1)) if vm else None, int(lg.group(1)) if lg else None)


def _mkwait(vm, lg):
    t = 's_waitcnt'
    if vm is not None:
        t += f' vmcnt({vm})'
    if lg is not None:
        t += f' lgkmcnt({lg})'
    return t


def insert_waits(paths, lds_age=150, vm_age=10**9):
    changed = True
    while changed:
        changed = False
        for path in paths:
            if _one_pass(path, lds_age, vm_age):
                changed = True


def _apply_wait(text, lq, vq):
    vm, lg = parse_wait(text)
    if vm is not None and vm < len(vq):
        vq = vq[len(vq) - vm:] if vm else []
    if lg is not None:
        if lg == 0:
            lq = []
        elif not any(e[2] == 'smem' for e in lq) and lg < len(lq):
            lq = lq[len(lq) - lg:]
    return lq, vq


def _one_pass(path, lds_age, vm_age):
    lq, vq = [], []
    now = 0
    changed = False
    for sec in path:
        k = 0
        while k < len(sec.ins):
            ins = sec.ins[k]
            if ins.kind == 'wait':
                lq, vq = _apply_wait(ins.text, lq, vq)
            need_l = need_v = None
            if lq or vq:
                touched = set(ins.rd) | set(ins.wr)
                for idx, e in enumerate(lq):
                    if e[0] & touched:
                        need_l = len(lq) - 1 - idx
                for idx, e in enumerate(vq):
                    if e[0] & touched:
                        need_v = len(vq) - 1 - idx
            if need_l is not None or need_v is not None:
                if need_l is not None:
                    if any(e[2] == 'smem' for e in lq):
                        need_l = 0
                    young = sum(1 for e in lq if now - e[1] < lds_age)
                    need_l = min(need_l, young, 15)
                if need_v is not None:
                    young = sum(1 for e in vq if now - e[1] < vm_age)
                    need_v = min(need_v, young, 63)
                prev = sec.ins[k - 1] if k > 0 else None
                if prev is not None and prev.kind == 'wait' and prev.auto:
                    pv, pl = parse_wait(prev.text)
                    nv = need_v if pv is None else (pv if need_v is None else min(pv, need_v))
                    nl = need_l if pl is None else (pl if need_l is None else min(pl, need_l))
                    w = I(_mkwait(nv, nl))
                    w.auto = True
                    sec.ins[k - 1] = w
                else:
                    w = I(_mkwait(need_v, need_l))
                    w.auto = True
                    sec.ins.insert(k, w)
                    k += 1
                lq, vq = _apply_wait(w.text, lq, vq)
                changed = True
            if ins.kind == 'dsr':
                lq.append((set(ins.wr), now, 'ds'))
            elif ins.kind == 'dsw':
                lq.append((set(), now, 'ds'))
            elif ins.kind == 'smem':
                lq.append((set(ins.wr), now, 'smem'))
            elif ins.kind == 'vld':
                vq.append((set(ins.wr), now, 'vm'))
            elif ins.kind in ('vst', 'dma'):
                vq.append((set(), now, 'vm'))
            now += 16 if ins.kind == 'mfma' else (ins.cost if ins.kind != 'label' else 0)
            k += 1
    return changed


def check_hazards(path, name=''):
    seq = [i for sec in path for i in sec.ins if i.kind != 'label']
    errs = []
    W = 24
    for k, c in enumerate(seq):
        dist = 0
        for j in range(k - 1, max(-1, k - W), -1):
            p = seq[j]
            need = 0
            why = ''
            pw, cr, cw = set(p.wr), set(c.rd), set(c.wr)
            vec_c = c.kind in ('valu', 'dsr', 'dsw', 'vld', 'vst', 'dma')
            if p.kind == 'valu':
                pv = {r for r in pw if r[0] in 'va' and r != 'vcc'}
                ps = {r for r in pw if r[0] == 's' or r == 'vcc'}
                if c.kind == 'mfma' and pv & cr:
                    need, why = 2, 'valu->mfma'
                if p.is_trans() and c.kind == 'valu' and not c.is_trans() and pv & cr:
                    need, why = max(need, 1), 'trans->valu'
                if c.op.startswith('v_permlane') and pv & cr:
                    need, why = max(need, 2), 'valu->permlane'
                if c.op.startswith(('v_readfirstlane', 'v_readlane')) and pv & cr:
                    need, why = max(need, 1), 'valu->readlane'
                if c.kind == 'valu' and ('dpp' in c.text or 'row_' in c.text or 'quad_perm' in c.text) and pv & cr:
                    need, why = max(need, 2), 'valu->dpp'
                if ps & cr and c.kind in ('vld', 'vst', 'dma'):
                    need, why = max(need, 5), 'valu sgpr->vmem'
                if ps & cr and c.kind == 'valu':
                    need, why = max(need, 2), 'valu sgpr->valu'
                if ps & cr and c.op.startswith(('v_readlane', 'v_writelane')):
                    need, why = max(need, 4), 'valu sgpr->lane select'
                if 'exec' in pw and c.kind == 'mfma':
                    need, why = max(need, 4), 'valu exec->mfma'
            if p.kind == 'salu' and 'm0' in pw and c.kind == 'dma':
                need, why = 1, 'm0->dma'
            if p.kind == 'mfma':
                big = '32x32' in p.op
                d_val = 12 if big else 8
                if vec_c and pw & (cr | cw):
                    need, why = d_val, 'mfma D->vector'
                if c.kind == 'mfma':
                    ab = set(c.rd) - set(c.srcc) if set(c.srcc) != pw else set(regs_of(c.text.split(',')[1].strip())) | set(regs_of(c.text.split(',')[2].strip()))
                    ab = set(regs_of(c.text.split(',')[1].strip())) | set(regs_of(c.text.split(',')[2].strip()))
                    if pw & ab:
                        need, why = d_val, 'mfma D->mfma AB'
                    elif pw & set(c.srcc) and pw != set(c.srcc):
                        need, why = (10 if big else 6), 'mfma D->mfma C partial'
                if c.kind == 'valu' and set(p.srcc) & cw and not (pw & cw):
                    need, why = max(need, 7 if big else 3), 'mfma C WAR'
            if p.kind == 'vst' and ('x4' in p.op or 'x3' in p.op) and c.kind in ('valu',):
                data = set(regs_of(p.text.split()[1].rstrip(','))) if p.op.startswith('buffer') else set(regs_of(p.text.split(',')[1].strip()))
                if data & cw:
                    need, why = 2, 'store data WAR'
            if need > dist:
                errs.append(f"{name}: {why} needs {need} has {dist}: [{p.text}] -> [{c.text}]")
            dist += p.states()
            if dist >= 20:
                break
    return errs


def kernel_text(name, secs):
    return f".p2align 8\n.type {name},@function\n{name}:\n" + '\n'.join(x.text() for x in secs) + "\n"


def kernel_desc(name, vgpr, accum, sgpr=96):
    return (f".amdhsa_kernel {name}\n  .amdhsa_next_free_vgpr {vgpr}\n  .amdhsa_next_free_sgpr {sgpr}\n"
            f"  .amdhsa_accum_offset {accum}\n  .amdhsa_group_segment_fixed_size 0\n  .amdhsa_kernarg_size 128\n"
            "  .amdhsa_user_sgpr_count 2\n  .amdhsa_user_sgpr_kernarg_segment_ptr 1\n"
            "  .amdhsa_system_sgpr_workgroup_id_x 1\n.end_amdhsa_kernel\n")
```

```python
import sys, importlib
sys.path.insert(0, 'gen')
from common import *
REF = 'adaLN_cond__compressed_kv_cla__moe_arch_mod__prompt.s.ref'


def assemble(kernels):
    hdr = open(REF).read().split('; Override launch geometry')[0]
    lines, code, desc = [], [], []
    seen = {}
    for name, fn in kernels:
        if name not in seen:
            secs, errs, m = fn(name)
            for e in errs:
                print("HAZARD", e, file=sys.stderr)
            seen[name] = m
            code.append(kernel_text(name, secs))
            desc.append(".p2align 6\n" + kernel_desc(name, m['vgpr'], m['accum'], m.get('sgpr', 96)))
        m = seen[name]
        lines.append(f"; @launch kernel={name} grid=({m['grid']},1,1) block=({m['block']},1,1) lds={m['lds']}")
    return (hdr + '\n'.join(lines) + '\n.amdgcn_target "amdgcn-amd-amdhsa--gfx950"\n.text\n' + ''.join(code)
            + '.section .rodata,"a"\n' + ''.join(desc))
```

```python
from asmlib import *

ARG = dict(x=0, ckv=8, wq=16, wuk=24, wuv=32, wo=40, bx=48, wr=56, wg=64, wu=72, wd=80, c=88, wmod=96, out=104, dbg=112, ws=120)
MB = 1 << 20
WS_MOD = 0x0
WS_H = 0x100000
WS_KV = 0x400000
WS_CTX = 0x2400000
WS_WOT = 0x3400000
WS_X1 = 0x3800000
WS_STATS = 0x3A00000
WS_R = 0x3B00000
WS_GU = 0x3B10000
WS_STAMP = 0x3C00000
WS_SYNC = 0x3D00000
SY_EPOCH = 0x0
SY_HDR = 0x1000
SY_SEG = 0x2000
SY_STATS = 0x20000
SY_PART = 0x80000
SY_SIZE = 0x100000
LCG_A, LCG_C = 0x9E3779B1, 0x7F4A7C15
SPIN = 400000
LOG2E = 1.4426950408889634
QSCALE = LOG2E * 128 ** -0.5


def f2u(x):
    import struct
    return struct.unpack('<I', struct.pack('<f', x))[0]


def srd(sec, d, ptr, off=0, size=0, off_sgpr=None):
    if off:
        sec.e(f"s_add_u32 {s(d)}, {s(ptr)}, {off:#x}", f"s_addc_u32 {s(d+1)}, {s(ptr+1)}, 0")
    else:
        sec.e(f"s_mov_b32 {s(d)}, {s(ptr)}", f"s_mov_b32 {s(d+1)}, {s(ptr+1)}")
    if off_sgpr is not None:
        sec.e(f"s_add_u32 {s(d)}, {s(d)}, {s(off_sgpr)}", f"s_addc_u32 {s(d+1)}, {s(d+1)}, 0")
    sec.e(f"s_mov_b32 {s(d+2)}, {size:#x}", f"s_mov_b32 {s(d+3)}, 0x20000")


def mfma(d, A, B, C=None):
    return I(f"v_mfma_f32_16x16x32_bf16 {d}, {A}, {B}, {d if C is None else C}")


OPT = dict(stamp=False, stflags="")
S_STAMP = 56


def stamp(sec, k):
    if OPT['stamp']:
        sec.e(f"s_memrealtime {s(S_STAMP + 4 * k, 2)}", f"s_memtime {s(S_STAMP + 4 * k + 2, 2)}", "s_waitcnt lgkmcnt(0)")


def stamp_out(sec, n, s_wave):
    if not OPT['stamp']:
        return
    sec.e("s_waitcnt vmcnt(0) lgkmcnt(0)", f"s_load_dwordx2 s[6:7], s[0:1], {ARG['ws']}", "s_waitcnt lgkmcnt(0)")
    srd(sec, 8, 6, off=WS_STAMP, size=MB)
    sec.e("s_lshl_b32 s3, s2, 2", f"s_add_u32 s3, s3, {s(s_wave)}", "s_lshl_b32 s3, s3, 7", "v_mov_b32 v1, 0")
    for k in range(n):
        sec.e(f"v_mov_b32 v2, {s(S_STAMP + 4 * k)}", f"v_mov_b32 v3, {s(S_STAMP + 4 * k + 2)}",
              f"buffer_store_dwordx2 v[2:3], v1, s[8:11], s3 offen offset:{8 * k}", "s_nop 1")
```

```python
from common import *

V_L = 2
V_B, V_NINF, V_LS, V_NP = 6, 7, 8, 12
V_XW, V_XR, V_XL, V_QW, V_QR, V_B2 = 14, 15, 16, 17, 18, 19
V_CM = 20
V_WA = 24
V_T = 32
V_PS = 40
V_S, V_P, V_NM, V_O = 64, 96, 112, 128
A_Q, A_K, A_V, A_X = 0, 64, 128, 192
HP = [192, 224, 0, 32]

S_KV, S_WQ, S_H, S_CT, S_MASK = 8, 12, 16, 20, 24
S_WAVE, S_HEAD, S_I, S_CNT, S_G, S_MA, S_MB, S_X1 = 32, 33, 34, 35, 36, 37, 38, 39
S_HQ, S_CO = 40, 44
S_FB, S_XLAST, S_BAD, S_T0, S_T1 = 48, 49, 50, 52, 53
S_TP = 54
S_BLK = 96
XBASE = 131072
DMA_COST = 8
THR = 0x5f800000


def O(slot, db):
    return V_O + slot * 32 + db * 4


def Sreg(par, kb):
    return V_S + par * 16 + kb * 4


def Preg(par, hf):
    return V_P + par * 8 + hf * 4


def qk_mfmas(slot, nkb, diag, par):
    out = []
    for kb in range(nkb):
        for dc in range(4):
            c = None
            if dc == 0:
                c = v(V_CM, 4) if kb == diag else v(V_NM + slot * 4, 4)
            out.append(mfma(v(Sreg(par, kb), 4), a(A_K + (kb * 4 + dc) * 4, 4), a(A_Q + slot * 16 + dc * 4, 4), c))
    return out


def pv_mfmas(slot, nhf, par, vb=A_V):
    return [mfma(v(O(slot, db), 4), a(vb + (db * 2 + hf) * 4, 4), v(Preg(par, hf), 4)) for db in range(8) for hf in range(nhf)]


def softmax(slot, nkb, par, lo=-1):
    out = []
    l = v(V_LS + slot)
    for kb in range(nkb):
        r = Sreg(par, kb)
        p = Preg(par, kb >> 1) + 2 * (kb & 1)
        E = lambda j: f"v_exp_f32 {v(r + j)}, {v(r + j)}"
        A = lambda j: f"v_add_f32 {l}, {l}, {v(r + j)}"
        C = lambda j: f"v_cvt_pk_bf16_f32 {v(p + j)}, {v(r + 2 * j)}, {v(r + 2 * j + 1)}"
        for t in (E(0), E(1), A(0), A(1), E(2), E(3), C(0), A(2), A(3), C(1)):
            out.append(F(t, lo, 10**6, 'sm'))
    if nkb & 1:
        p = Preg(par, nkb >> 1) + 2
        out.append(F(f"v_mov_b64 {v(p, 2)}, 0", lo, 10**6, 'sm'))
    return out


def kread(kb, dc, off, base=V_B):
    return f"ds_read_b128 {a(A_K + (kb * 4 + dc) * 4, 4)}, {v(base)} offset:{off + (kb * 4 + dc) * 1024}"


def vread(db, hf, off, dst=A_V):
    return f"ds_read_b128 {a(dst + (db * 2 + hf) * 4, 4)}, {v(V_B)} offset:{off + 16384 + (db * 2 + hf) * 1024}"


def k_main(off, n, nkb=3, base=V_B):
    return [F(kread(kb, dc, off, base), kb * 4 + dc, min(n - 1, n + kb * 4 + dc - 12), 'k') for kb in range(nkb) for dc in range(4)]


def k_late(off):
    return [F(kread(3, dc, off), -1, 1 + dc // 2, 'k') for dc in range(4)]


def v_first(off, nq):
    return [F(vread(db, hf, off), nq + db * 2 + hf, nq + db * 2 + hf + 6, 'v') for db in range(4) for hf in range(2)]


def v_second(off, nq, nhf):
    return [F(vread(db, hf, off), -1, max(0, nq + db * nhf - 10), 'v') for db in range(4, 8) for hf in range(2)]


def dma8(name, m0, voff, los, post=()):
    out = []
    for k in range(8):
        g = []
        if k % 4 == 0:
            c = m0[1] + k * 1024
            g.append(f"s_add_u32 m0, {s(m0[0])}, {c}" if c else f"s_mov_b32 m0, {s(m0[0])}")
            g.append("s_nop 0")
        g.append(grp(f"buffer_load_dwordx4 {v(voff + k // 4)}, {s(S_KV, 4)}, {s(S_G)} offen offset:{(k % 4) * 1024} lds", name, k == 0))
        if k == 7:
            g += list(post)
        out.append(g)
    res = []
    for k, g in enumerate(out):
        if k % 4 == 0:
            res.append(F(g[0], los[k][0], los[k][1], 'd'))
            res.append(F(g[2:], los[k][0] + 1, los[k][1] + 1, 'd', DMA_COST + 4 * (len(g) - 3), ))
        else:
            res.append(F(g, los[k][0], los[k][1], 'd', DMA_COST + 4 * (len(g) - 1)))
    return res


def fix_m0(ins):
    out = []
    for i in ins:
        if i.kind == 'dma' and out and out[-1].kind == 'salu' and 'm0' in out[-1].wr:
            out.append(I("s_nop 0"))
        out.append(i)
    return out


def stage(sec, qk, pv, sm, extra=()):
    ms = (qk_mfmas(*qk) if qk else []) + (pv_mfmas(*pv) if pv else [])
    fl = (softmax(*sm) if sm else []) + list(extra)
    sec.ext(fix_m0(interleave(ms, fl)))


def diag_init(slot, lo=-1, hi=10**6):
    return [F(f"v_cndmask_b32_e64 {v(V_CM + j)}, {v(V_NINF)}, {v(V_NM + slot * 4)}, {s(S_MASK + 2 * j, 2)}", lo, hi, 'cm') for j in range(4)]


def l_reduce(slot, t):
    l = v(V_LS + slot)
    out = []
    for sw in ("v_permlane16_swap_b32", "v_permlane32_swap_b32"):
        out += [f"v_mov_b32 {v(t + 1)}, {l}", "s_nop 1", f"{sw} {l}, {v(t + 1)}", f"v_add_f32 {l}, {l}, {v(t + 1)}"]
    out += [f"v_rcp_f32 {v(t)}, {l}", f"v_cmp_nge_f32 vcc, {THR:#x}, {l}", f"s_or_b64 {s(S_BAD, 2)}, {s(S_BAD, 2)}, vcc"]
    return out


def finish_slot(slot, r, packed, part=None, zero=False):
    out = []
    for dc in range(4):
        o = O(slot, 2 * dc)
        t = V_T + (dc & 1) * 4
        if part is not None:
            p = O(part, 2 * dc)
            if packed:
                out += [f"v_pk_add_f32 {v(o + 2 * j, 2)}, {v(o + 2 * j, 2)}, {v(p + 2 * j, 2)}" for j in range(4)]
            else:
                out += [f"v_add_f32 {v(o + j)}, {v(o + j)}, {v(p + j)}" for j in range(8)]
        if packed:
            out += [f"v_pk_mul_f32 {v(o + 2 * j, 2)}, {v(o + 2 * j, 2)}, {v(r, 2)} op_sel_hi:[1,0]" for j in range(4)]
        else:
            out += [f"v_mul_f32 {v(o + j)}, {v(o + j)}, {v(r)}" for j in range(8)]
        out += [f"v_cvt_pk_bf16_f32 {v(t + j)}, {v(o + 2 * j)}, {v(o + 2 * j + 1)}" for j in range(4)]
        out.append(f"buffer_store_dwordx4 {v(t, 4)}, {v(V_L)}, {s(S_CT, 4)}, {s(S_CO + slot)} offen offset:{dc * 1024}{OPT['stflags']}")
        if zero:
            out += [f"v_mov_b64 {v(o + 2 * j, 2)}, 0" for j in range(4)]
    return out


def q_read(slot, dst):
    return [f"ds_read_b128 {a(dst + dc * 4, 4)}, {v(V_QR)} offset:{(slot * 4 + dc) * 1024}" for dc in range(4)]


def spread(n, lo, hi):
    return [(lo + (hi - lo) * k // n, lo + (hi - lo) * (k + 1) // n + 2) for k in range(n)]


def tile_dma(m0, lo0, post):
    f = dma8('T', (m0, 0), V_L, [(4, 10), (10, 16), (16, 22), (22, 28), (2, 6), (8, 14), (16, 22), (22, 28)], post)
    return f[:5], f[5:8], f[8:]


def full_tile(sec, off, last, m0, post, koff):
    d0, d1, d2 = tile_dma(m0, 0, post)
    stage(sec, (0, 4, None, 0), (2, 2, 0), (3, 4, 1), k_late(off) + d0)
    stage(sec, (1, 4, None, 1), (3, 2, 1), (0, 4, 0), v_first(off, 16) + d1)
    stage(sec, (2, 4, None, 0), (0, 2, 0), (1, 4, 1), v_second(off, 16, 2) + d2)
    sec.e(need('T', 2), "s_barrier")
    x = [F(f"v_xor_b32 {v(V_B)}, 0x10000, {v(V_B)}", -1, -1, 'k')] if last else []
    return x


def build_p1(name):
    sec = Sec("p1")
    adv = f"s_add_u32 {s(S_G)}, {s(S_G)}, 32768"
    full_tile(sec, 0, False, S_MB, [adv, f"s_xor_b32 {s(S_MB)}, {s(S_MB)}, 0x10000"], 0)
    stage(sec, (3, 4, None, 1), (1, 2, 1), (2, 4, 0), k_main(32768, 32))
    x = full_tile(sec, 32768, True, S_MA, [adv, f"s_xor_b32 {s(S_MA)}, {s(S_MA)}, 0x10000"], 0)
    ctl = [F(f"s_sub_u32 {s(S_CNT)}, {s(S_CNT)}, 1", 20, 30, 'c'), F(f"s_cmp_lg_u32 {s(S_CNT)}, 0", 20, 30, 'c')]
    stage(sec, (3, 4, None, 1), (1, 2, 1), (2, 4, 0), x + k_main(0, 32) + ctl)
    sec.e(f"s_cbranch_scc1 {name}_p1")
    return sec


def build_d1(name, w):
    sec = Sec(f"d1_{w}")
    sec.e(f"{name}_d1_{w}:")
    n0, h0 = w + 1, (w + 2) // 2
    n1, h1 = 4 - w, (5 - w) // 2
    d0, d1, d2 = tile_dma(S_MB, 0, [f"s_add_u32 {s(S_G)}, {s(S_G)}, {s(S_T1)}"])
    stage(sec, (0, 4, None, 0), (2, 2, 0), (3, 4, 1), k_late(0) + d0)
    stage(sec, (1, 4, None, 1), (3, 2, 1), (0, 4, 0), v_first(0, 16) + d1 + diag_init(2, 4, 28))
    stage(sec, (2, n0, w, 0), (0, 2, 0), (1, 4, 1), v_second(0, 4 * n0, 2) + [F(f.ins, -1, 10**6, 'd', f.cost) for f in d2])
    sec.e(need('T', 2), "s_barrier")
    sw2 = [F(t, 4, 10**6, 'q') for t in q_read(0, A_Q + 32)] + [F(f"v_mov_b32 {v(V_NM + 8 + j)}, {v(V_NP)}", 4, 10**6, 'q') for j in range(4)]
    stage(sec, (3, 4, None, 1), (1, 2, 1), (2, n0, 0), k_main(32768, 32) + diag_init(3, 4, 28) + sw2)
    lr = [F(t, 2, 10**6, 'e') for t in l_reduce(2, V_PS)]
    stage(sec, (3, n1, 3 - w, 0), (2, h0, 0), (3, 4, 1), k_late(32768) + lr)
    sw3 = [F(t, 2, 10**6, 'q') for t in q_read(1, A_Q + 48)] + [F(f"v_mov_b32 {v(V_NM + 12 + j)}, {v(V_NP + 1)}", 2, 10**6, 'q') for j in range(4)]
    ep = finish_slot(2, V_PS, False, zero=True)
    half = len(ep) // 2
    stage(sec, (0, 4, None, 1), (3, 2, 1), (3, n1, 0), v_first(32768, 16) + sw3 + [F(t, 5, 10**6, 'e') for t in ep[:half]])
    sec.e(need('T', 0), "s_barrier")
    x = [F(f"v_xor_b32 {v(V_B2)}, {s(S_X1)}, {v(V_B)}", -1, -1, 'k')]
    kd = dma8('K2', (S_MA, 0), V_L, spread(8, 2, 20))
    lr = [F(t, 2, 10**6, 'e2') for t in l_reduce(3, V_PS + 2)]
    stage(sec, (1, 4, None, 0), (3, h1, 0), (0, 4, 1),
          x + k_main(0, 16 + 8 * h1, base=V_B2) + v_second(32768, 16, h1) + kd + [F(t, -1, 10**6, 'e') for t in ep[half:]] + lr + diag_init(0, 2))
    sec.e(f"v_mov_b32 {v(V_B)}, {v(V_B2)}", f"v_mov_b64 {v(V_LS + 2, 2)}, 0",
          f"s_mov_b32 {s(S_CNT)}, {s(S_T0)}", "s_nop 3")
    sec.ext(finish_slot(3, V_PS + 2, True, zero=True))
    sec.e("s_waitcnt lgkmcnt(0)", "s_barrier")
    sec.e(f"s_cmp_lg_u32 {s(S_CNT)}, 0", f"s_cbranch_scc1 {name}_p2", f"s_branch {name}_d2_{w}")
    return sec


def build_p2(name):
    sec = Sec("p2")
    vd = dma8('V2', (S_MA, 16384), V_L + 2, spread(8, 3, 28),
              [f"s_add_u32 {s(S_G)}, {s(S_G)}, 65536", f"s_xor_b32 {s(S_MA)}, {s(S_MA)}, 0x10000"])
    stage(sec, (2, 4, None, 1), (0, 2, 1), (1, 4, 0), k_late(0) + vd)
    sec.e(need('V2', 1), "s_barrier")
    kd = dma8('K2', (S_MA, 0), V_L, spread(4, 0, 16) + spread(4, 12, 28))
    stage(sec, (3, 4, None, 0), (1, 2, 0), (2, 4, 1), v_first(0, 16) + kd[:5])
    c = [F(f"s_cmp_eq_u32 {s(S_CNT)}, 1", 24, 30, 'c'), F(f"s_cselect_b32 {s(S_X1)}, {s(S_XLAST)}, 0x10000", 24, 30, 'c')]
    stage(sec, (0, 4, None, 1), (2, 2, 1), (3, 4, 0), v_second(0, 16, 2) + kd[5:] + c)
    sec.e(need('K2', 1), "s_barrier")
    x = [F(f"v_xor_b32 {v(V_B)}, {s(S_X1)}, {v(V_B)}", -1, -1, 'k')]
    ctl = [F(f"s_sub_u32 {s(S_CNT)}, {s(S_CNT)}, 1", 20, 30, 'c'), F(f"s_cmp_lg_u32 {s(S_CNT)}, 0", 20, 30, 'c')]
    stage(sec, (1, 4, None, 0), (3, 2, 0), (0, 4, 1), x + k_main(0, 32) + ctl)
    sec.e(f"s_cbranch_scc1 {name}_p2")
    return sec


def build_d2(name, w):
    sec = Sec(f"d2_{w}")
    sec.e(f"{name}_d2_{w}:")
    n0, h0 = w + 1, (w + 2) // 2
    n1, h1 = 4 - w, (5 - w) // 2
    wr = [F(f"ds_write_b128 {v(V_XW)}, {v(O(sl, db), 4)} offset:{(sl - 2) * 8192 + db * 1024}", 2 if sl == 2 else 6, 10**6, 'x', 12)
          for sl in (2, 3) for db in range(8)]
    stage(sec, (0, n0, w, 1), (0, 2, 1), (1, 4, 0), k_late(0) + wr[:8])
    sec.e("s_waitcnt vmcnt(0)", "s_barrier")
    lw = [F(f"ds_write_b32 {v(V_XL)}, {v(V_LS + 2 + k)} offset:{k * 256}", -1, 10**6, 'x') for k in range(2)]
    kd = [F(kread(kb, dc, 32768), kb * 4 + dc, min(31, 32 + kb * 4 + dc - 12), 'k') for kb in range(n1) for dc in range(4)]
    stage(sec, (1, 4, None, 0), (1, 2, 0), (0, n0, 1),
          [F(f.ins, -1, 24, 'x', 12) for f in wr[8:]] + lw + kd + v_first(0, 16) + diag_init(1, 2, 28))
    sec.e("s_waitcnt lgkmcnt(0)", "s_barrier")
    rd = [F(f"ds_read_b128 {v(O(sl, db), 4)}, {v(V_XR)} offset:{(sl - 2) * 8192 + db * 1024}", 2, 10**6, 'x') for sl in (2, 3) for db in range(8)]
    lrd = [F(f"v_xor_b32 {v(V_XL)}, 512, {v(V_XL)}", 0, 10**6, 'x')]
    lrd += [F(f"ds_read_b32 {v(V_LS + 2 + k)}, {v(V_XL)} offset:{k * 256}", 0, 10**6, 'x') for k in range(2)]
    stage(sec, (1, n1, 3 - w, 1), (0, h0, 1), (1, 4, 0), v_second(0, 4 * n1, h0) + lrd + rd[:8])
    vd = [F(vread(db, hf, 32768, A_K), -1, 6, 'v') for db in range(8) for hf in range(h1)]
    e0 = [f"v_add_f32 {v(V_LS)}, {v(V_LS)}, {v(V_LS + 2)}"] + l_reduce(0, V_PS) + finish_slot(0, V_PS, False, part=2)
    cut = len(e0) // 3
    stage(sec, None, (1, 2, 0), (1, n1, 1, 2), vd + rd[8:] + [F(t, 0, 10**6, 'e') for t in e0[:cut]])
    e1 = [f"v_add_f32 {v(V_LS + 1)}, {v(V_LS + 1)}, {v(V_LS + 3)}"] + l_reduce(1, V_PS + 2)
    sec.e("s_nop 0")
    stage(sec, None, (1, h1, 1, A_K), None, [F(t, -1, 10**6, 'e') for t in e0[cut:] + e1])
    sec.e("s_nop 3")
    sec.ext(finish_slot(1, V_PS + 2, True, part=3))
    sec.e(f"s_branch {name}_fin")
    return sec


def w_dma(p):
    out = [f"s_add_u32 m0, {s(S_MA)}, {p * 16384}", f"s_add_u32 {s(S_T0)}, {s(S_G)}, {p * 64 * 8192}"]
    out += [grp(f"buffer_load_dwordx4 {v(V_PS + k)}, {s(S_WQ, 4)}, {s(S_T0)} offen offset:{k * 1024} lds", 'W', k == 0) for k in range(4)]
    return out


def h_load(p, slot):
    return [f"buffer_load_dwordx4 {a(HP[p & 3] + slot * 8 + kk * 4, 4)}, {v(V_L + ((p >> 1) & 1))}, {s(S_H, 4)}, {s(S_HQ + slot)} offen "
            f"offset:{(p & 1) * 2048 + kk * 1024}" for kk in range(2)]


def w_read(p, db):
    wb = A_V if p & 1 else A_K
    return [f"ds_read_b64_tr_b16 {a(wb + db * 8 + kk * 4 + 2 * h, 2)}, {v(V_WA + db)} offset:{(p & 3) * 16384 + kk * 8192 + h * 1024}"
            for kk in range(2) for h in range(2)]


def q_finish(slot):
    out = []
    for dc in range(4):
        o, t = O(slot, 2 * dc), V_T + (dc & 1) * 4
        g = [f"v_cvt_pk_bf16_f32 {v(t + j)}, {v(o + 2 * j)}, {v(o + 2 * j + 1)}" for j in range(4)]
        if slot < 2:
            g.append(f"ds_write_b128 {v(V_QW)}, {v(t, 4)} offset:{(slot * 4 + dc) * 1024}")
        g += [f"v_accvgpr_write_b32 {a(A_Q + slot * 16 + dc * 4 + j)}, {v(t + j)}" for j in range(4)]
        g += [f"v_mov_b64 {v(o + 2 * j, 2)}, 0" for j in range(4)]
        out.append(g)
    return out


def row_max(b, m):
    t = V_T + 6 + (b & 1)
    out = []
    for sw in ("v_permlane16_swap_b32", "v_permlane32_swap_b32"):
        out += [f"v_mov_b32 {v(t)}, {v(m)}", "s_nop 1", f"{sw} {v(m)}, {v(t)}", f"v_max_f32 {v(m)}, {v(m)}, {v(t)}"]
    dst = [V_NM + b * 4 + j for j in range(4)] if b < 4 else [V_NP + b - 4]
    out += [f"v_sub_f32 {v(d)}, 0, {v(m)}" for d in dst]
    return out


def qsrc(b):
    return A_Q + b * 16 if b < 4 else A_X + (b - 4) * 16


def build_qproj(name):
    sec = Sec("qproj")
    tpos = {1: 0, 3: 1, 5: 2}
    for p in range(8):
        wb = A_V if p & 1 else A_K
        ms = [mfma(v(O(sl, db), 4), a(wb + db * 8 + kk * 4, 4), a(HP[p & 3] + sl * 8 + kk * 4, 4), "0" if p == 0 and kk == 0 else None)
              for sl in range(4) for db in range(8) for kk in range(2)]
        fl = []
        if p == 3:
            fl += [F(f"v_add_u32 {v(V_WA + db)}, 0x10000, {v(V_WA + db)}", -1, 0, 'w') for db in range(8)]
        if p < 7:
            for db in range(8):
                fl += [F(t, db * 6, 54, 'w') for t in w_read(p + 1, db)]
        if p == 0:
            fl += [F(w_dma(7)[:3], 0, 8, 'd')] + [F(t, 0, 16, 'd', DMA_COST) for t in w_dma(7)[3:]]
            fl += [F(f"s_add_u32 {s(S_HQ + k)}, {s(S_HQ + k)}, 8192", -1, 8, 'h') for k in range(4)]
            fl += [F([f"s_lshl_b32 {s(S_MA)}, {s(S_WAVE)}, 13", f"s_mov_b32 {s(S_G)}, {s(S_MA)}"], 20, 40, 'd')]
        if p < 4:
            for sl in range(4):
                fl += [F(t, 16 * sl + 15, 63, 'h', DMA_COST) for t in h_load(p + 4, sl)]
        if p in tpos:
            fl += dma8('T', (S_MA, tpos[p] * 32768), V_L, spread(8, 2, 50), [f"s_add_u32 {s(S_G)}, {s(S_G)}, 32768"])
        if p == 6:
            fl += [F(f"v_mov_b32 {v(Sreg(1, 0) + k)}, {v(V_NINF)}", 0, 60, 'i') for k in range(16)]
            fl += [F(f"v_mov_b64 {v(Preg(0, 0) + 2 * k, 2)}, 0", 0, 60, 'i') for k in range(4)]
            fl += [F(f"v_mov_b64 {v(V_LS + 2 * k, 2)}, 0", 0, 60, 'i') for k in range(2)]
            fl += [F([f"s_add_u32 {s(S_MB)}, {s(S_MA)}, 0x18000", f"s_mov_b32 {s(S_CNT)}, {s(S_I)}"], 0, 60, 'i')]
        if p == 7:
            fl += [F(kread(kb, dc, 0), 0, 40, 'k') for kb in range(4) for dc in range(4)]
            for sl in range(3):
                for dc, g in enumerate(q_finish(sl)):
                    fl += [F(t, min(63, 16 * sl + 4 * dc + 10), 10**6, 'e') for t in g]
        sec.ext(fix_m0(interleave(ms, fl)))
        if p in (0, 2, 4):
            sec.e(need('W', 4 - p, 0), "s_barrier")
        if p == 6:
            sec.e(need('T', 2, 0), "s_barrier")
    sec.e("s_waitcnt lgkmcnt(0)", "s_barrier")
    sec.ext(q_read(0, A_X) + q_read(1, A_X + 16))
    ms, fl = [], []
    order = [0, 1, 2, 4, 5, 3]
    for b in order:
        for dc in range(4):
            c = None if dc else (v(V_CM, 4) if b == 2 else "0")
            ms.append(mfma(v(V_PS + 4 * b, 4), a(A_K + dc * 4, 4), a(qsrc(b) + dc * 4, 4), c))
    for g in q_finish(3):
        fl += [F(t, 1, 18, 'e') for t in g]
    sec.ext(interleave(ms, fl))
    sec.e("s_nop 1")
    red = []
    for b in order:
        r = V_PS + 4 * b
        sec.e(f"v_max3_f32 {v(r)}, {v(r)}, {v(r + 1)}, {v(r + 2)}")
        if b == 5:
            sec.e("s_nop 1")
    for b in order:
        r = V_PS + 4 * b
        sec.e(f"v_max_f32 {v(r)}, {v(r)}, {v(r + 3)}")
    for sw in ("v_permlane16_swap_b32", "v_permlane32_swap_b32"):
        for b in order:
            sec.e(f"v_mov_b32 {v(V_PS + 4 * b + 1)}, {v(V_PS + 4 * b)}")
        for b in order:
            sec.e(f"{sw} {v(V_PS + 4 * b)}, {v(V_PS + 4 * b + 1)}")
        for b in order:
            sec.e(f"v_max_f32 {v(V_PS + 4 * b)}, {v(V_PS + 4 * b)}, {v(V_PS + 4 * b + 1)}")
    for b in order:
        for d in ([V_NM + b * 4 + j for j in range(4)] if b < 4 else [V_NP + b - 4]):
            sec.e(f"v_sub_f32 {v(d)}, 0, {v(V_PS + 4 * b)}")
    sec.e(f"s_cmp_lg_u32 {s(S_FB)}, 0", f"s_cbranch_scc1 {name}_slow")
    return sec


def build_slow(name):
    sec = Sec("slow")
    sec.e(f"{name}_slow:")
    for b in range(6):
        sec.e(f"v_mov_b32 {v(V_T + b)}, {v(V_NINF)}")
    sec.e(f"s_mov_b32 {s(S_T0)}, 0")
    lp = Sec("slowloop")
    lp.e(f"{name}_slowloop:")
    lp.e(f"s_lshr_b32 {s(S_T1)}, {s(S_T0)}, 2", f"s_lshl_b32 {s(S_T1)}, {s(S_T1)}, 15", f"s_and_b32 s3, {s(S_T0)}, 3", "s_lshl_b32 s3, s3, 12",
         f"s_add_u32 {s(S_T1)}, {s(S_T1)}, s3")
    for dc in range(4):
        lp.e(f"buffer_load_dwordx4 {v(V_S + dc * 4, 4)}, {v(V_L)}, {s(S_KV, 4)}, {s(S_T1)} offen offset:{dc * 1024}")
    lp.e("s_waitcnt vmcnt(0)")
    for b in range(6):
        lp.e(f"s_cmp_lt_u32 {s(S_T0)}, {s(S_BLK + b)}", "s_cselect_b64 s[4:5], -1, 0", f"s_cmp_eq_u32 {s(S_T0)}, {s(S_BLK + b)}")
        for j in range(4):
            lp.e(f"s_cselect_b64 s[6:7], {s(S_MASK + 2 * j, 2)}, s[4:5]", f"v_cndmask_b32_e64 {v(V_CM + j)}, {v(V_NINF)}, 0, s[6:7]")
        lp.e("s_nop 1")
        for dc in range(4):
            lp.e(mfma(v(V_PS + 4 * b, 4), v(V_S + dc * 4, 4), a(qsrc(b) + dc * 4, 4), None if dc else v(V_CM, 4)))
    lp.e("s_nop 7")
    for b in range(6):
        r = V_PS + 4 * b
        lp.e(f"v_max3_f32 {v(V_T + b)}, {v(V_T + b)}, {v(r)}, {v(r + 1)}", f"v_max3_f32 {v(V_T + b)}, {v(V_T + b)}, {v(r + 2)}, {v(r + 3)}")
    lp.e(f"s_add_u32 {s(S_T0)}, {s(S_T0)}, 1", f"s_cmp_lt_u32 {s(S_T0)}, 128", f"s_cbranch_scc1 {name}_slowloop")
    end = Sec("slowend")
    for b in range(6):
        end.ext(row_max(b, V_T + b))
    end.e(f"s_branch {name}_go2")
    return sec, lp, end


def build(name="attn_kernel"):
    p = Sec("pro")
    p.e("s_cmp_lt_u32 s2, 256", f"s_cbranch_scc1 {name}_go", "s_endpgm", f"{name}_go:")
    stamp(p, 0)
    p.e(f"s_load_dwordx2 s[4:5], s[0:1], {ARG['wq']}", f"s_load_dwordx2 s[6:7], s[0:1], {ARG['ws']}")
    p.e("v_lshrrev_b32 v1, 6, v0", "v_and_b32 v0, 63, v0", f"v_readfirstlane_b32 {s(S_WAVE)}, v1")
    p.e(f"s_and_b32 {s(S_T0)}, s2, 7", f"s_lshr_b32 {s(S_T1)}, s2, 3", f"s_lshl_b32 {s(S_HEAD)}, {s(S_T0)}, 2",
        f"s_lshr_b32 {s(S_I)}, {s(S_T1)}, 2", f"s_and_b32 {s(S_T1)}, {s(S_T1)}, 3", f"s_add_u32 {s(S_HEAD)}, {s(S_HEAD)}, {s(S_T1)}")
    p.e(f"s_mov_b32 {s(S_FB)}, {OPT.get('force_fb', 0)}")
    p.e(f"v_lshlrev_b32 {v(V_L)}, 4, v0")
    for k, o in enumerate((4096, 16384, 20480)):
        p.e(f"v_add_u32 {v(V_L + 1 + k)}, {o}, {v(V_L)}")
    p.e(f"v_mov_b32 {v(V_NINF)}, 0xff800000")
    p.e(f"s_sub_u32 {s(S_T0)}, 15, {s(S_I)}", f"s_lshl_b32 {s(S_T0)}, {s(S_T0)}, 3", f"s_lshl_b32 {s(S_T1)}, {s(S_I)}, 3",
        f"s_add_u32 {s(S_BLK)}, {s(S_T0)}, {s(S_WAVE)}", f"s_xor_b32 {s(S_BLK + 1)}, {s(S_BLK)}, 7",
        f"s_add_u32 {s(S_BLK + 2)}, {s(S_T1)}, {s(S_WAVE)}", f"s_xor_b32 {s(S_BLK + 3)}, {s(S_BLK + 2)}, 7",
        f"s_xor_b32 {s(S_BLK + 4)}, {s(S_BLK)}, 1", f"s_xor_b32 {s(S_BLK + 5)}, {s(S_BLK + 1)}, 1")
    for k in range(4):
        p.e(f"s_lshr_b32 {s(S_T0)}, {s(S_BLK + k)}, 2", f"s_lshl_b32 {s(S_T0)}, {s(S_T0)}, 19", f"s_and_b32 {s(S_T1)}, {s(S_BLK + k)}, 3",
            f"s_lshl_b32 {s(S_T1)}, {s(S_T1)}, 12", f"s_add_u32 {s(S_T0)}, {s(S_T0)}, {s(S_T1)}", f"s_lshl_b32 {s(S_T1)}, {s(S_HEAD)}, 14",
            f"s_add_u32 {s(S_CO + k)}, {s(S_T0)}, {s(S_T1)}")
    p.e("v_lshrrev_b32 v32, 4, v0", "v_and_b32 v33, 15, v0", "v_lshlrev_b32 v34, 2, v32")
    for j in range(4):
        p.e(f"v_add_u32 v35, {j}, v34", f"v_cmp_le_u32_e64 {s(S_MASK + 2 * j, 2)}, v35, v33")
    p.e("s_waitcnt lgkmcnt(0)")
    srd(p, S_WQ, 4, size=4 * MB)
    srd(p, S_H, 6, off=WS_H, size=2 * MB)
    srd(p, S_CT, 6, off=WS_CTX, size=16 * MB)
    p.e(f"s_lshl_b32 {s(S_T0)}, {s(S_HEAD)}, 20")
    srd(p, S_KV, 6, off=WS_KV, size=0, off_sgpr=S_T0)
    p.e(f"s_sub_u32 {s(S_T0)}, 16, {s(S_I)}", f"s_lshl_b32 {s(S_KV + 2)}, {s(S_T0)}, 16")
    p.e(f"s_and_b32 {s(S_TP)}, {s(S_I)}, 1", f"s_lshl_b32 {s(S_TP)}, {s(S_TP)}, 16")
    p.e(f"s_and_b32 {s(S_T0)}, {s(S_WAVE)}, 1", f"s_lshl_b32 {s(S_T1)}, {s(S_T0)}, 15", f"s_or_b32 {s(S_XLAST)}, {s(S_T1)}, 0x10000")
    p.e(f"s_add_u32 {s(S_T1)}, {s(S_T1)}, {s(S_TP)}", f"s_add_u32 {s(S_T1)}, {s(S_T1)}, 16384",
        f"s_lshl_b32 {s(S_T0)}, {s(S_T0)}, 14", f"s_add_u32 {s(S_T0)}, {s(S_T0)}, {XBASE}",
        f"s_cmp_lt_u32 {s(S_WAVE)}, 2", f"s_cselect_b32 {s(S_T0)}, {s(S_T1)}, {s(S_T0)}", f"s_movk_i32 {s(S_T1)}, 0x4000",
        f"s_cselect_b32 {s(S_T1)}, 0x8000, {s(S_T1)}",
        f"v_add_u32 {v(V_XW)}, {s(S_T0)}, {v(V_L)}", f"v_xor_b32 {v(V_XR)}, {s(S_T1)}, {v(V_XW)}")
    p.e(f"s_lshl_b32 {s(S_T0)}, {s(S_WAVE)}, 13", f"s_add_u32 {s(S_T0)}, {s(S_T0)}, {XBASE}",
        f"v_add_u32 {v(V_QW)}, {s(S_T0)}, {v(V_L)}", f"v_xor_b32 {v(V_QR)}, 0x2000, {v(V_QW)}")
    r = Sec("rerun")
    r.e(f"{name}_rerun:")
    r.e(f"s_mov_b64 {s(S_BAD, 2)}, 0")
    r.e(f"v_lshrrev_b32 v0, 4, {v(V_L)}", "v_lshrrev_b32 v32, 4, v0", "v_and_b32 v33, 15, v0")
    r.e(f"s_lshl_b32 {s(S_T0)}, {s(S_WAVE)}, 9", f"s_add_u32 {s(S_T0)}, {s(S_T0)}, {s(S_TP)}", f"v_lshlrev_b32 {v(V_XL)}, 2, v0",
        f"v_add_u32 {v(V_XL)}, {s(S_T0)}, {v(V_XL)}")
    for k in range(4):
        r.e(f"s_lshl_b32 {s(S_HQ + k)}, {s(S_BLK + k)}, 14")
        r.e(f"v_or_b32 v34, {((k >> 1) & 1) << 2}, v32", "v_lshrrev_b32 v35, 1, v33", "v_xor_b32 v34, v35, v34", "v_lshlrev_b32 v34, 1, v34",
            "v_and_b32 v35, 1, v33", "v_or_b32 v34, v34, v35", "v_lshlrev_b32 v34, 4, v34", "v_lshl_add_u32 v34, v32, 13, v34",
            f"v_add_u32 {v(V_PS + k)}, {4 * 8192 * k - 1024 * k}, v34")
    r.e(f"s_lshl_b32 {s(S_MA)}, {s(S_WAVE)}, 12", f"s_lshl_b32 {s(S_G)}, {s(S_WAVE)}, 17", f"s_lshl_b32 {s(S_T0)}, {s(S_HEAD)}, 8",
        f"s_add_u32 {s(S_G)}, {s(S_G)}, {s(S_T0)}")
    for q in range(4):
        r.ext(w_dma(q))
        for sl in range(4):
            r.ext(h_load(q, sl))
    for q in range(4, 7):
        r.ext(w_dma(q))
    r.e("v_lshrrev_b32 v34, 2, v33", "v_and_b32 v35, 1, v32", "v_lshl_or_b32 v35, v35, 2, v34", "v_lshl_add_u32 v34, v32, 3, v34",
        "v_lshlrev_b32 v34, 8, v34", "v_lshl_add_u32 v34, v35, 5, v34", "v_and_b32 v35, 3, v33", f"v_lshl_add_u32 {v(V_WA)}, v35, 3, v34")
    for db in range(1, 8):
        r.e(f"v_xor_b32 {v(V_WA + db)}, {db << 5}, {v(V_WA)}")
    r.e(f"v_mov_b32 {v(V_B)}, {v(V_L)}")
    r.e(f"s_cmp_eq_u32 {s(S_BLK + 2)}, 0")
    for j in range(4):
        r.e(f"s_cselect_b64 s[4:5], {s(S_MASK + 2 * j, 2)}, -1", f"v_cndmask_b32_e64 {v(V_CM + j)}, {v(V_NINF)}, 0, s[4:5]")
    r.e(need('W', 5), "s_barrier")
    stamp(r, 1)
    for db in range(8):
        r.ext(w_read(0, db))
    q = build_qproj(name)
    g2 = Sec("go2")
    g2.e(f"{name}_go2:")
    stamp(g2, 2)
    g2.e(f"s_cmp_eq_u32 {s(S_CNT)}, 0", f"s_cbranch_scc1 {name}_d1")
    l1 = Sec("l1").e(f"{name}_p1:")
    p1 = build_p1(name)
    dsp = Sec("dsp1")
    dsp.e(f"{name}_d1:")
    stamp(dsp, 3)
    dsp.e(f"s_lshl_b32 {s(S_T0)}, {s(S_I)}, 1", f"s_sub_u32 {s(S_T0)}, 14, {s(S_T0)}", f"s_cmp_eq_u32 {s(S_T0)}, 0",
          f"s_cselect_b32 {s(S_X1)}, 0x10000, {s(S_XLAST)}",
          f"s_lshr_b32 {s(S_T1)}, {s(S_WAVE)}, 1", f"s_lshl_b32 {s(S_T1)}, {s(S_T1)}, 14", f"s_add_u32 {s(S_MA)}, {s(S_MA)}, {s(S_T1)}",
          f"s_add_u32 {s(S_T1)}, {s(S_T1)}, 32768")
    for w in range(1, 4):
        dsp.e(f"s_cmp_eq_u32 {s(S_WAVE)}, {w}", f"s_cbranch_scc1 {name}_d1_{w}")
    d1 = [build_d1(name, w) for w in range(4)]
    l2 = Sec("l2").e(f"{name}_p2:")
    p2 = build_p2(name)
    dsp2 = Sec("dsp2")
    for w in range(1, 4):
        dsp2.e(f"s_cmp_eq_u32 {s(S_WAVE)}, {w}", f"s_cbranch_scc1 {name}_d2_{w}")
    d2 = [build_d2(name, w) for w in range(4)]
    fin = Sec("fin")
    fin.e(f"{name}_fin:")
    stamp(fin, 4)
    fin.e(f"s_cmp_lg_u64 {s(S_BAD, 2)}, 0", f"s_cselect_b32 {s(S_T0)}, 1, 0", f"v_mov_b32 v32, {s(S_T0)}",
          f"s_lshl_b32 {s(S_T1)}, {s(S_WAVE)}, 2", f"s_add_u32 {s(S_T1)}, {s(S_T1)}, {s(S_TP)}", f"v_mov_b32 v33, {s(S_T1)}",
          f"v_mov_b32 v34, {s(S_TP)}", "ds_write_b32 v33, v32 offset:32768", "s_waitcnt lgkmcnt(0)", "s_barrier",
          "ds_read_b128 v[36:39], v34 offset:32768", "s_waitcnt lgkmcnt(0)", "v_or3_b32 v36, v36, v37, v38", "v_or_b32 v36, v36, v39", "s_nop 0",
          f"v_readfirstlane_b32 {s(S_T0)}, v36", f"s_cmp_gt_u32 {s(S_T0)}, {s(S_FB)}", f"s_cbranch_scc0 {name}_end",
          f"s_mov_b32 {s(S_FB)}, 1", "s_barrier", f"s_branch {name}_rerun", f"{name}_end:")
    stamp(fin, 5)
    stamp_out(fin, 6, S_WAVE)
    fin.e("s_endpgm")
    s0, s1, s2 = build_slow(name)
    secs = [p, r, q, g2, l1, p1, dsp] + d1 + [l2, p2, dsp2] + d2 + [fin, s0, s1, s2]
    paths = []
    for w in range(4):
        for n1, n2 in ((2, 2), (0, 2), (1, 0)):
            paths.append([p, r, q, g2] + [p1] * n1 + [dsp, d1[w]] + [p2] * n2 + ([dsp2] if n2 else []) + [d2[w], fin])
    paths.append([p, r, q, s0, s1, s1, s2, g2, p1, dsp, d1[0], p2, p2, dsp2, d2[0], fin, r, q])
    resolve_needs(paths)
    insert_waits(paths)
    errs = []
    for pa in paths:
        errs += check_hazards(pa, name)
    return secs, sorted(set(errs)), dict(vgpr=512, accum=256, grid=256, block=256, lds=163840, sgpr=102)


if __name__ == "__main__":
    secs, errs, m = build()
    print('\n'.join(errs))
    print(kernel_text("attn_kernel", secs))
```

```python
from common import *

S_C, S_W, S_O = 8, 12, 16
S_WAVE, S_HEAD, S_KT = 20, 21, 22
S_SOC, S_SOW = 23, 24
S_M0 = 25
S_CNT = 26
S_T0, S_T1 = 27, 28
S_ST = 32
V_OC, V_OW = 2, 6
V_C0, V_C1, V_W0, V_WT, V_LANE = 10, 11, 12, 13, 15
V_TMP = 16
A_ACC7, A_C, A_W = 0, 32, 96


def acc(db, jb):
    return a(A_ACC7 + jb * 4, 4) if db == 7 else v(32 + (db * 8 + jb) * 4, 4)


def cfrag(jb, kk):
    return A_C + (jb * 2 + kk) * 4


def wfrag(db, kk):
    return A_W + (db % 4) * 8 + kk * 4


def slot_mfma(part, db, jb, kk, first):
    W, C = a(wfrag(db, kk), 4), a(cfrag(jb, kk), 4)
    c0 = "0" if (first and kk == 0) else None
    return mfma(acc(db, jb), W, C, c0) if part == 0 else mfma(acc(db, jb), C, W, c0)


def w_reads(db, lo, hi):
    t = V_WT + (db & 1)
    out = [F(f"v_xor_b32 {v(t)}, {db << 5}, {v(V_W0)}", lo, hi, 'w')] if db else [F(f"v_mov_b32 {v(t)}, {v(V_W0)}", lo, hi, 'w')]
    for kk in range(2):
        for h in range(2):
            out.append(F(f"ds_read_b64_tr_b16 {a(wfrag(db, kk) + 2 * h, 2)}, {v(t)} offset:{kk * 8192 + h * 1024}", lo, hi, 'w'))
    return out


def c_read(jb, kk):
    return f"ds_read_b128 {a(cfrag(jb, kk), 4)}, {v(V_C0 + kk)} offset:{jb * 2048}"


def dma_chunk():
    groups = []
    for which, (srd_, vo, so, step, ldsoff) in enumerate(((S_C, V_OC, S_SOC, 32768, 0), (S_W, V_OW, S_SOW, 16 * 8192, 32768))):
        for hi in range(2):
            g = [[f"s_add_u32 m0, {s(S_M0)}, {ldsoff + hi * 4096}", f"s_add_u32 {s(S_T0)}, {s(so)}, {hi * step}",
                  f"buffer_load_dwordx4 {v(vo)}, {s(srd_, 4)}, {s(S_T0)} offen lds"]]
            for k in range(1, 4):
                g.append([f"buffer_load_dwordx4 {v(vo + k)}, {s(srd_, 4)}, {s(S_T0)} offen offset:{k * 1024} lds"])
            groups += g
    adv = [f"s_add_u32 {s(S_SOC)}, {s(S_SOC)}, 128", f"s_add_u32 {s(S_SOW)}, {s(S_SOW)}, {64 * 8192}",
           f"s_xor_b32 {s(S_M0)}, {s(S_M0)}, 0x10000"]
    return groups, adv


def store_frag(part, idx, srcs, tmp):
    tt, fi = idx
    out = []
    regs = []
    for n, blk in enumerate(srcs):
        r = regs_of(blk)
        if r[0][0] == 'a':
            t2 = V_TMP + 8 + (n * 4)
            for q in range(4):
                out.append(f"v_accvgpr_read_b32 {v(t2 + q)}, {r[q]}")
            r = [v(t2 + q) for q in range(4)]
        regs += r
    for q in range(4):
        out.append(f"v_cvt_pk_bf16_f32 {v(tmp + q)}, {regs[2 * q]}, {regs[2 * q + 1]}")
    out.append(f"buffer_store_dwordx4 {v(tmp, 4)}, {v(V_LANE)}, {s(S_O, 4)}, {s(S_ST + tt * 4 + (fi >> 2))} offen offset:{(fi & 3) * 1024}{OPT['stflags']}")
    return out


def frags_after(part, db):
    out = []
    if part == 0:
        if db & 1:
            for jb in range(8):
                out.append(((jb >> 2, (jb & 3) * 4 + (db >> 1)), [acc(db - 1, jb), acc(db, jb)]))
    else:
        for tt in range(2):
            for hf in range(2):
                out.append(((tt, db * 2 + hf), [acc(db, 4 * tt + 2 * hf), acc(db, 4 * tt + 2 * hf + 1)]))
    return out


def body(part, name, head7, first, dma, last):
    sec = Sec(name)
    ms, fl = [], []
    o = 16 if head7 else 0
    if head7:
        sec.e("s_waitcnt vmcnt(0) lgkmcnt(0)", "s_barrier")
        sec.e(f"v_xor_b32 {v(V_C0)}, 0x10000, {v(V_C0)}", f"v_xor_b32 {v(V_C1)}, 0x10000, {v(V_C1)}", f"v_xor_b32 {v(V_W0)}, 0x10000, {v(V_W0)}")
        for jb in range(8):
            for kk in range(2):
                ms.append(slot_mfma(part, 7, jb, kk, False))
                fl.append(F(c_read(jb, kk), jb * 2 + kk, jb * 2 + kk + 1, 'c'))
        fl += w_reads(0, 0, 6) + w_reads(1, 6, 20)
    for db in range(7):
        for jb in range(8):
            for kk in range(2):
                ms.append(slot_mfma(part, db, jb, kk, first))
    for db in range(2, 8):
        fl += w_reads(db, o + (db - 2) * 16 + 2, o + (db - 2) * 16 + 14)
    if dma:
        groups, adv = dma_chunk()
        for k, g in enumerate(groups):
            fl.append(F(g, 18 + 3 * k, 24 + 3 * k, 'd'))
        fl.append(F(adv, 70, 90, 'd'))
    if last:
        n = 0
        for db in range(6 if part == 0 else 7):
            fr = frags_after(part, db)
            lo = o + (db + 1) * 16 + 4
            if lo >= len(ms) - 1:
                continue
            for k, (idx, srcs) in enumerate(fr):
                tmp = V_TMP + (n % 2) * 4
                n += 1
                for t in store_frag(part, idx, srcs, tmp):
                    fl.append(F(t, lo, 10**6, 'st'))
    sec.ext(interleave(ms, fl))
    return sec


def tail(part, name):
    sec = Sec(name)
    ms = [slot_mfma(part, 7, jb, kk, False) for jb in range(8) for kk in range(2)]
    fl = []
    n = 0
    if part == 1:
        for idx, srcs in frags_after(1, 6):
            for t in store_frag(part, idx, srcs, V_TMP + (n % 2) * 4):
                fl.append(F(t, 6, 10**6, 'st'))
            n += 1
    sec.ext(interleave(ms, fl))
    sec.e("s_nop 7")
    for idx, srcs in frags_after(part, 7):
        sec.ext(store_frag(part, idx, srcs, V_TMP + (n % 2) * 4))
        n += 1
    return sec


def build(name="kv_kernel"):
    p = Sec("kv_pro")
    p.e("s_cmp_lt_u32 s2, 256", f"s_cbranch_scc1 {name}_go", "s_endpgm", f"{name}_go:")
    stamp(p, 0)
    p.e(f"s_load_dwordx2 s[4:5], s[0:1], {ARG['ckv']}", f"s_load_dwordx4 s[40:43], s[0:1], {ARG['wuk']}",
        f"s_load_dwordx2 s[6:7], s[0:1], {ARG['ws']}")
    p.e("v_lshrrev_b32 v1, 6, v0", f"v_and_b32 {v(V_LANE)}, 63, v0", f"v_readfirstlane_b32 {s(S_WAVE)}, v1")
    p.e(f"s_and_b32 {s(S_T0)}, s2, 7", f"s_lshr_b32 {s(S_T1)}, s2, 3", f"s_lshl_b32 {s(S_HEAD)}, {s(S_T0)}, 2",
        f"s_lshr_b32 {s(S_KT)}, {s(S_T1)}, 2", f"s_and_b32 {s(S_T1)}, {s(S_T1)}, 3", f"s_add_u32 {s(S_HEAD)}, {s(S_HEAD)}, {s(S_T1)}")
    L = V_LANE
    p.e(f"v_lshrrev_b32 v16, 3, {v(L)}", f"v_and_b32 v17, 7, {v(L)}", f"v_lshrrev_b32 v18, 4, {v(L)}", f"v_and_b32 v19, 15, {v(L)}")
    for k in range(4):
        p.e(f"v_add_u32 v20, {4 * k}, v18", "v_and_b32 v20, 7, v20", "v_xor_b32 v20, v17, v20", "v_lshlrev_b32 v20, 4, v20",
            "v_lshl_add_u32 v20, v16, 10, v20", f"v_add_u32 {v(V_OC + k)}, {8192 * k - 1024 * k}, v20")
        p.e(f"v_or_b32 v20, {((k >> 1) & 1) << 2}, v18", "v_lshrrev_b32 v21, 1, v19", "v_xor_b32 v20, v21, v20", "v_lshlrev_b32 v20, 1, v20",
            "v_and_b32 v21, 1, v19", "v_or_b32 v20, v20, v21", "v_lshlrev_b32 v20, 4, v20", "v_lshl_add_u32 v20, v18, 13, v20",
            f"v_add_u32 {v(V_OW + k)}, {4 * 8192 * k - 1024 * k}, v20")
    p.e(f"s_and_b32 {s(S_T0)}, {s(S_WAVE)}, 1", f"s_lshl_b32 {s(S_T0)}, {s(S_T0)}, 14", f"s_lshr_b32 {s(S_T1)}, {s(S_WAVE)}, 1",
        f"s_lshl_b32 {s(S_T1)}, {s(S_T1)}, 14", f"s_add_u32 {s(S_T1)}, {s(S_T1)}, 32768")
    p.e("v_lshrrev_b32 v20, 1, v19", "v_xor_b32 v20, v18, v20", "v_lshlrev_b32 v20, 4, v20", "v_lshl_add_u32 v20, v19, 7, v20",
        f"v_add_u32 {v(V_C0)}, {s(S_T0)}, v20", f"v_xor_b32 {v(V_C1)}, 64, {v(V_C0)}")
    p.e("v_lshrrev_b32 v20, 2, v19", "v_and_b32 v21, 1, v18", "v_lshl_or_b32 v21, v21, 2, v20", "v_lshl_add_u32 v20, v18, 3, v20",
        "v_lshlrev_b32 v20, 8, v20", "v_lshl_add_u32 v20, v21, 5, v20", "v_and_b32 v21, 3, v19", "v_lshl_add_u32 v20, v21, 3, v20",
        f"v_add_u32 {v(V_W0)}, {s(S_T1)}, v20")
    p.e(f"v_lshlrev_b32 {v(L)}, 4, {v(L)}")
    p.e("s_waitcnt lgkmcnt(0)")
    p.e(f"s_lshl_b32 {s(S_T0)}, {s(S_KT)}, 18")
    srd(p, S_C, 4, size=256 * 1024, off_sgpr=S_T0)
    p.e(f"s_cmp_lt_u32 {s(S_WAVE)}, 2", "s_cselect_b32 s44, s40, s42", "s_cselect_b32 s45, s41, s43")
    srd(p, S_W, 44, size=4 * MB)
    p.e(f"s_lshl_b32 {s(S_T0)}, {s(S_HEAD)}, 20")
    srd(p, S_O, 6, off=WS_KV, size=MB, off_sgpr=S_T0)
    p.e(f"s_lshl_b32 {s(S_SOC)}, {s(S_WAVE)}, 16",
        f"s_and_b32 {s(S_T0)}, {s(S_WAVE)}, 1", f"s_lshl_b32 {s(S_SOW)}, {s(S_T0)}, 18", f"s_lshl_b32 {s(S_T1)}, {s(S_HEAD)}, 8",
        f"s_add_u32 {s(S_SOW)}, {s(S_SOW)}, {s(S_T1)}", f"s_lshl_b32 {s(S_M0)}, {s(S_WAVE)}, 13")
    for c in range(2):
        groups, adv = dma_chunk()
        for g in groups:
            p.ext(g)
        p.ext(adv)
    p.e(f"s_lshl_b32 {s(S_T1)}, {s(S_KT)}, 17", f"s_and_b32 {s(S_T0)}, {s(S_WAVE)}, 1", f"s_lshl_b32 {s(S_T0)}, {s(S_T0)}, 16",
        f"s_add_u32 {s(S_T1)}, {s(S_T1)}, {s(S_T0)}", f"s_lshr_b32 {s(S_T0)}, {s(S_WAVE)}, 1", f"s_lshl_b32 {s(S_T0)}, {s(S_T0)}, 14",
        f"s_add_u32 {s(S_T1)}, {s(S_T1)}, {s(S_T0)}")
    for tt in range(2):
        for q in range(4):
            p.e(f"s_add_u32 {s(S_ST + tt * 4 + q)}, {s(S_T1)}, {tt * 32768 + q * 4096}")
    for k in range(32):
        p.e(f"v_accvgpr_write_b32 {a(A_ACC7 + k)}, 0")
    p.e(f"s_mov_b32 {s(S_CNT)}, 6")
    p.e("s_waitcnt vmcnt(16)", "s_barrier")
    stamp(p, 1)
    p.e("s_waitcnt lgkmcnt(0)")
    for f in w_reads(0, 0, 0):
        p.ext(f.ins)
    for jb in range(8):
        for kk in range(2):
            p.e(c_read(jb, kk))
            if jb == 2 and kk == 1:
                for f in w_reads(1, 0, 0):
                    p.ext(f.ins)
    p.e(f"s_cmp_lt_u32 {s(S_WAVE)}, 2", f"s_cbranch_scc0 {name}_v")
    secs, paths = [p], []
    for part in range(2):
        tag = "kv"[part]
        lab = Sec("lab").e(f"{name}_{tag}:")
        b0 = body(part, f"{tag}0", False, True, False, False)
        ll = Sec("ll").e(f"{name}_{tag}loop:")
        bl = body(part, f"{tag}l", True, False, True, False)
        bl.e(f"s_sub_u32 {s(S_CNT)}, {s(S_CNT)}, 1", f"s_cmp_lg_u32 {s(S_CNT)}, 0", f"s_cbranch_scc1 {name}_{tag}loop")
        st = Sec("st")
        stamp(st, 2)
        bz = body(part, f"{tag}z", True, False, False, True)
        bt = tail(part, f"{tag}t")
        stamp(bt, 3)
        if OPT['stamp']:
            bt.e("s_waitcnt vmcnt(0)")
        stamp(bt, 4)
        stamp_out(bt, 5, S_WAVE)
        bt.e("s_endpgm")
        secs += [lab, b0, ll, bl, st, bz, bt]
        paths.append([p, b0, bl, bl, st, bz, bt])
    insert_waits(paths)
    errs = []
    for pa in paths:
        errs += check_hazards(pa, name)
    return secs, errs, dict(vgpr=512, accum=256, grid=256, block=256, lds=131072)


if __name__ == "__main__":
    secs, errs, m = build()
    print('\n'.join(errs))
    print(kernel_text("kv_kernel", secs))
```

```python
from common import *
from k_small import unpack, round_bf16

V_TID, V_LANE, V_C, V_G = 0, 1, 2, 3
V_Q, V_L16, V_RW, V_RR, V_XO, V_A0, V_A1 = 4, 8, 9, 12, 13, 14, 15
V_X, V_GA, V_CB, V_SB, V_GB, V_WR = 16, 24, 40, 56, 72, 88
V_CF, V_SF, V_WF, V_GU, V_DN = 96, 104, 112, 116, 132
V_X1, V_U, V_T = 148, 164, 180
V_ACC = 192
V_GUF = 208
DNF = [24 + k for k in range(16)] + [240 + k for k in range(16)]
A_C, A_W = 0, 128

S_WO, S_CX, S_SY, S_X, S_MOD, S_WRD, S_WG, S_WU, S_WD, S_OUT = 8, 12, 16, 20, 24, 28, 32, 36, 40, 44
S_WAVE, S_QT, S_NT, S_TAG, S_T0, S_T1, S_SW, S_SC = 48, 49, 50, 51, 52, 53, 54, 55
S_GU = 88
S_CNT, S_CG, S_WB, S_CB, S_WT, S_XO = 96, 97, 98, 99, 100, 101
L_BEST, L_ROW, L_GU, L_Y = 0, 64, 1024, 2048
SC = " sc1"


def acc(q, nb):
    return V_ACC + q * 16 + nb * 4


def step_loads(st):
    sl = st & 7
    out = [f"buffer_load_dwordx4 {a(A_W + sl * 16 + nb * 4, 4)}, {v(V_L16)}, {s(S_WO, 4)}, {s(S_SW)} offen offset:{nb * 1024}" for nb in range(4)]
    out.append(f"s_add_u32 {s(S_SW)}, {s(S_SW)}, 4096")
    out += [f"buffer_load_dwordx4 {a(A_C + sl * 16 + q * 4, 4)}, {v(V_Q + q)}, {s(S_CX, 4)}, {s(S_SC)} offen offset:{(st & 3) * 1024}{OPT.get('ldflags', '')}"
            for q in range(4)]
    if st & 3 == 3:
        out.append(f"s_add_u32 {s(S_SC)}, {s(S_SC)}, 16384")
    return out


def small_loads():
    L = lambda n, d, vo, srd_, so, off: f"buffer_load_dword{'x' + str(n) if n > 1 else ''} {v(d, n)}, {v(vo)}, {s(srd_, 4)}, {so} offen offset:{off}"
    out = [L(4, V_X + 4 * k, V_XO, S_X, s(S_XO), 64 * k) for k in range(2)]
    out.append(f"s_lshl_b32 {s(S_T0)}, {s(S_NT)}, 8")
    for dst, vec in ((V_GA, 2), (V_CB, 4), (V_SB, 3), (V_GB, 5)):
        out.append(f"s_add_u32 {s(S_T1)}, {s(S_T0)}, {vec * 2048}")
        out += [L(4, dst + 4 * k, V_A0, S_MOD, s(S_T1), o) for k, o in enumerate((0, 16, 128, 144))]
    out.append(f"s_lshl_b32 {s(S_T0)}, {s(S_NT)}, 7")
    out += [L(4, V_WR + 4 * k, V_A1, S_WRD, s(S_T0), 64 * k) for k in range(2)]
    out += [f"v_lshlrev_b32 {v(V_T)}, 5, {v(V_LANE)}", f"s_movk_i32 {s(S_T0)}, 0x2000", f"s_movk_i32 {s(S_T1)}, 0x1800"]
    out += [L(4, V_CF + 4 * k, V_T, S_MOD, s(S_T0), 16 * k) for k in range(2)]
    out += [L(4, V_SF + 4 * k, V_T, S_MOD, s(S_T1), 16 * k) for k in range(2)]
    out.append(L(4, V_WF, V_L16, S_WRD, "0", 0))
    out += [f"s_movk_i32 {s(S_T0)}, 7168", f"v_mul_lo_u32 {v(V_T + 1)}, {v(V_TID)}, {s(S_T0)}", f"s_lshl_b32 {s(S_T0)}, {s(S_CG)}, 4"]
    out += [L(4, V_GU + 8 * m + 4 * r, V_T + 1, (S_WG, S_WU)[m], s(S_T0), 3584 * r) for m in range(2) for r in range(2)]
    out += [f"v_and_b32 {v(V_T + 2)}, 127, {v(V_TID)}", f"v_lshlrev_b32 {v(V_T + 2)}, 3, {v(V_T + 2)}", f"s_lshl_b32 {s(S_T0)}, {s(S_CG)}, 13",
            f"s_add_u32 {s(S_T1)}, {s(S_T0)}, 4096"]
    out += [L(2, V_DN + 2 * r, V_T + 2, S_WD, s(S_T0 + (r >> 2)), (r & 3) * 1024) for r in range(8)]
    return out


def swap_red(sec, regs, op, sws=("v_permlane16_swap_b32", "v_permlane32_swap_b32"), t=None):
    t = V_T + 4 if t is None else t
    for sw in sws:
        for k, r in enumerate(regs):
            sec.e(f"v_mov_b32 {v(t + k)}, {v(r)}")
        sec.e("s_nop 1" if len(regs) < 2 else "s_nop 0")
        for k, r in enumerate(regs):
            sec.e(f"{sw} {v(r)}, {v(t + k)}")
        for k, r in enumerate(regs):
            sec.e(f"{op} {v(r)}, {v(r)}, {v(t + k)}")


def dpp_red(sec, regs, op):
    for ctl in ("quad_perm:[1,0,3,2]", "quad_perm:[2,3,0,1]", "row_half_mirror", "row_mirror"):
        if len(regs) < 3:
            sec.e(f"s_nop {2 - len(regs)}")
        for r in regs:
            sec.e(f"{op}_dpp {v(r)}, {v(r)}, {v(r)} {ctl} row_mask:0xf bank_mask:0xf")


def poll(name, loads, check):
    lp = Sec(name)
    lp.e(f"{name}:")
    lp.ext(loads)
    lp.e("s_waitcnt vmcnt(0)")
    lp.ext(check)
    lp.e("s_cmp_eq_u64 vcc, -1", f"s_cbranch_scc1 {name}_ok", f"s_sub_u32 {s(S_CNT)}, {s(S_CNT)}, 1", f"s_cbranch_scc0 {name}", f"{name}_ok:")
    return lp


def build(name="out_kernel"):
    p = Sec("pro")
    p.e("s_cmp_lt_u32 s2, 256", f"s_cbranch_scc1 {name}_go", "s_endpgm", f"{name}_go:")
    stamp(p, 0)
    p.e(f"s_load_dwordx2 s[64:65], s[0:1], {ARG['x']}", f"s_load_dwordx2 s[66:67], s[0:1], {ARG['wr']}",
        f"s_load_dwordx4 s[68:71], s[0:1], {ARG['wg']}", f"s_load_dwordx2 s[72:73], s[0:1], {ARG['wd']}",
        f"s_load_dwordx2 s[74:75], s[0:1], {ARG['out']}", f"s_load_dwordx2 s[76:77], s[0:1], {ARG['ws']}")
    p.e(f"v_lshrrev_b32 v4, 6, v0", f"v_and_b32 {v(V_LANE)}, 63, v0", f"v_readfirstlane_b32 {s(S_WAVE)}, v4",
        f"v_and_b32 {v(V_C)}, 15, v0", f"v_lshrrev_b32 {v(V_G)}, 4, {v(V_LANE)}", f"v_lshlrev_b32 {v(V_L16)}, 4, {v(V_LANE)}")
    p.e("s_and_b32 s3, s2, 7", "s_lshr_b32 s4, s2, 3", f"s_lshr_b32 {s(S_NT)}, s4, 2", "s_and_b32 s5, s4, 3", f"s_lshl_b32 {s(S_QT)}, s3, 2",
        f"s_add_u32 {s(S_QT)}, {s(S_QT)}, s5", "s_mul_i32 s3, s3, 28", f"s_add_u32 {s(S_CG)}, s3, s4", "s_cmp_lt_u32 s4, 28",
        f"s_cselect_b32 {s(S_CG)}, {s(S_CG)}, 0")
    for q in range(4):
        p.e(f"s_add_u32 s3, {s(S_WAVE)}, {q}", "s_and_b32 s3, s3, 3", "s_lshl_b32 s4, s3, 12", f"v_add_u32 {v(V_Q + q)}, s4, {v(V_L16)}")
        p.e("s_lshl_b32 s4, s3, 14", f"s_add_u32 s4, s4, {q * 4096}", f"v_add_u32 {v(V_RW + q - 1 if q else V_RR)}, s4, {v(V_L16)}")
    p.e(f"s_lshl_b32 {s(S_SW)}, {s(S_NT)}, 19", f"s_lshl_b32 s3, {s(S_WAVE)}, 17", f"s_add_u32 {s(S_SW)}, {s(S_SW)}, s3",
        f"s_lshl_b32 {s(S_SC)}, {s(S_QT)}, 19", f"s_add_u32 {s(S_SC)}, {s(S_SC)}, s3")
    p.e("s_waitcnt lgkmcnt(0)")
    srd(p, S_WO, 76, off=WS_WOT, size=4 * MB)
    srd(p, S_CX, 76, off=WS_CTX, size=16 * MB)
    for st in range(7):
        p.ext(step_loads(st))
    srd(p, S_SY, 76, off=WS_SYNC, size=SY_SIZE)
    p.e(f"s_load_dword {s(S_TAG)}, {s(S_SY, 2)}, {SY_EPOCH}")
    srd(p, S_X, 64, size=2 * MB)
    srd(p, S_MOD, 76, off=WS_MOD, size=3072 * 4)
    srd(p, S_WRD, 66, size=1024)
    srd(p, S_WG, 68, size=512 * 3584)
    srd(p, S_WU, 70, size=512 * 3584)
    srd(p, S_WD, 72, size=1792 * 1024)
    srd(p, S_OUT, 74, size=2 * MB)
    p.e(f"v_lshlrev_b32 {v(V_A1)}, 4, {v(V_G)}", f"v_lshlrev_b32 {v(V_A0)}, 5, {v(V_G)}", f"v_lshl_add_u32 {v(V_XO)}, {v(V_C)}, 10, {v(V_A1)}")
    p.e(f"s_lshl_b32 {s(S_XO)}, {s(S_QT)}, 16", f"s_lshl_b32 s3, {s(S_WAVE)}, 14", f"s_add_u32 {s(S_XO)}, {s(S_XO)}, s3",
        f"s_lshl_b32 s3, {s(S_NT)}, 7", f"s_add_u32 {s(S_XO)}, {s(S_XO)}, s3", f"s_mov_b32 {s(S_CNT)}, {SPIN}")
    p.e("s_waitcnt lgkmcnt(0)", f"s_mul_i32 {s(S_TAG)}, {s(S_TAG)}, {LCG_A:#x}", f"s_add_u32 {s(S_TAG)}, {s(S_TAG)}, {LCG_C:#x}")
    k = Sec("kloop")
    sm = small_loads()
    per = (len(sm) + 5) // 6
    for st in range(32):
        sl = st & 7
        ms = [mfma(v(acc(q, nb), 4), a(A_W + sl * 16 + nb * 4, 4), a(A_C + sl * 16 + q * 4, 4), "0" if st == 0 else None)
              for q in (1, 2, 3, 0) for nb in range(4)]
        fl = [F(t, -1, 12, 'l') for t in (step_loads(st + 7) if st + 7 < 32 else sm[(st - 25) * per:(st - 24) * per])]
        k.ext(interleave(ms, fl))
    stamp(k, 1)
    e = Sec("red")
    e.e("s_nop 1")
    for q in range(1, 4):
        for nb in range(4):
            e.e(f"ds_write_b128 {v(V_RW + q - 1)}, {v(acc(q, nb), 4)} offset:{nb * 1024}")
    e.e("s_waitcnt lgkmcnt(0)", "s_barrier")
    for q in range(1, 4):
        for nb in range(4):
            e.e(f"ds_read_b128 {v(acc(q, nb), 4)}, {v(V_RR)} offset:{q * 4096 + nb * 1024}")
    unpack(e, V_X1, V_X, 8)
    unpack(e, V_U, V_WR, 8)
    for j in range(8):
        r = V_CB + 2 * j
        e.e(f"v_add_f32 {v(r)}, 1.0, {v(r)}", f"v_add_f32 {v(r + 1)}, 1.0, {v(r + 1)}", f"v_cvt_pk_bf16_f32 {v(V_T)}, {v(r)}, {v(r + 1)}",
            f"v_lshlrev_b32 {v(r)}, 16, {v(V_T)}", f"v_and_b32 {v(r + 1)}, 0xffff0000, {v(V_T)}",
            f"v_pk_mul_f32 {v(V_U + 2 * j, 2)}, {v(V_U + 2 * j, 2)}, {v(r, 2)}")
    for q in range(1, 4):
        for j in range(8):
            e.e(f"v_pk_add_f32 {v(V_ACC + 2 * j, 2)}, {v(V_ACC + 2 * j, 2)}, {v(acc(q, 0) + 2 * j, 2)}")
    for j in range(8):
        e.e(f"v_pk_fma_f32 {v(V_X1 + 2 * j, 2)}, {v(V_ACC + 2 * j, 2)}, {v(V_GA + 2 * j, 2)}, {v(V_X1 + 2 * j, 2)}")
    for j in range(8):
        e.e(f"v_cvt_pk_bf16_f32 {v(V_X + j)}, {v(V_X1 + 2 * j)}, {v(V_X1 + 2 * j + 1)}")
    unpack(e, V_X1, V_X, 8)
    T = V_T
    e.e(f"v_pk_add_f32 {v(T + 4, 2)}, {v(V_X1, 2)}, {v(V_X1 + 2, 2)}", f"v_pk_mul_f32 {v(T + 6, 2)}, {v(V_X1, 2)}, {v(V_X1, 2)}",
        f"v_pk_mul_f32 {v(T + 8, 2)}, {v(V_X1, 2)}, {v(V_U, 2)}")
    for j in range(1, 8):
        x = v(V_X1 + 2 * j, 2)
        if j > 1:
            e.e(f"v_pk_add_f32 {v(T + 4, 2)}, {v(T + 4, 2)}, {x}")
        e.e(f"v_pk_fma_f32 {v(T + 6, 2)}, {x}, {x}, {v(T + 6, 2)}", f"v_pk_fma_f32 {v(T + 8, 2)}, {x}, {v(V_U + 2 * j, 2)}, {v(T + 8, 2)}")
    for n in range(3):
        e.e(f"v_add_f32 {v(T + n)}, {v(T + 4 + 2 * n)}, {v(T + 5 + 2 * n)}")
    swap_red(e, [T, T + 1, T + 2], "v_add_f32")
    e.e(f"v_mov_b32 {v(T + 3)}, {s(S_TAG)}", f"v_lshlrev_b32 {v(V_A0)}, 4, {v(V_C)}",
        f"s_lshl_b32 {s(S_T0)}, {s(S_QT)}, 13", f"s_lshl_b32 s3, {s(S_WAVE)}, 8", f"s_add_u32 {s(S_T0)}, {s(S_T0)}, s3",
        f"s_add_u32 {s(S_T0)}, {s(S_T0)}, {SY_STATS}", f"s_lshl_b32 s3, {s(S_NT)}, 10", f"s_add_u32 {s(S_T1)}, {s(S_T0)}, s3",
        "s_mov_b64 exec, 0xffff", f"buffer_store_dwordx4 {v(T, 4)}, {v(V_A0)}, {s(S_SY, 4)}, {s(S_T1)} offen{SC}", "s_mov_b64 exec, -1")
    e.e(f"v_lshl_add_u32 {v(V_A0)}, {v(V_G)}, 11, {v(V_A0)}")
    unpack(e, V_GUF, V_WF, 4)
    for j in range(4):
        r = V_CF + 2 * j
        e.e(f"v_add_f32 {v(r)}, 1.0, {v(r)}", f"v_add_f32 {v(r + 1)}, 1.0, {v(r + 1)}", f"v_cvt_pk_bf16_f32 {v(V_WF)}, {v(r)}, {v(r + 1)}",
            f"v_lshlrev_b32 {v(r)}, 16, {v(V_WF)}", f"v_and_b32 {v(r + 1)}, 0xffff0000, {v(V_WF)}")
    for base in (V_CF, V_SF):
        e.e(f"v_mul_f32 {v(base)}, {v(base)}, {v(V_GUF)}")
        for j in range(1, 8):
            e.e(f"v_fmac_f32 {v(base)}, {v(base + j)}, {v(V_GUF + j)}")
    dpp_red(e, [V_CF, V_SF], "v_add_f32")
    swap_red(e, [V_CF, V_SF], "v_add_f32", t=V_WF)
    unpack(e, V_GUF, V_GU, 16)
    for r in range(16):
        e.e(f"v_lshlrev_b32 {v(DNF[2 * r])}, 16, {v(V_DN + r)}", f"v_and_b32 {v(DNF[2 * r + 1])}, 0xffff0000, {v(V_DN + r)}")
    stamp(e, 2)
    h1 = poll(f"{name}_h1", [f"buffer_load_dwordx4 {v(T + 4 * n, 4)}, {v(V_A0)}, {s(S_SY, 4)}, {s(S_T0)} offen offset:{1024 * n}{SC}" for n in range(2)],
              [f"v_cmp_eq_u32 s[4:5], {s(S_TAG)}, {v(T + 3)}", f"v_cmp_eq_u32 vcc, {s(S_TAG)}, {v(T + 7)}", "s_and_b64 vcc, vcc, s[4:5]"])
    c = Sec("cand")
    stamp(c, 3)
    for n in range(3):
        c.e(f"v_add_f32 {v(T + n)}, {v(T + n)}, {v(T + 4 + n)}")
    swap_red(c, [T, T + 1, T + 2], "v_add_f32")
    MU, RS, R = T, T + 1, T + 2
    c.e(f"v_mul_f32 {v(MU)}, {f2u(1 / 512):#x}, {v(MU)}", f"v_mul_f32 {v(RS)}, {f2u(1 / 512):#x}, {v(RS)}",
        f"v_fma_f32 {v(RS)}, -{v(MU)}, {v(MU)}, {v(RS)}", f"v_max_f32 {v(RS)}, 0, {v(RS)}", f"v_add_f32 {v(RS)}, {f2u(1e-5):#x}, {v(RS)}",
        f"v_rsq_f32 {v(RS)}, {v(RS)}", f"v_fma_f32 {v(R)}, -{v(MU)}, {v(V_CF)}, {v(R)}", f"v_fma_f32 {v(R)}, {v(R)}, {v(RS)}, {v(V_SF)}",
        f"v_mov_b32 {v(T + 3)}, {v(R)}")
    dpp_red(c, [T + 3], "v_max_f32")
    c.e(f"v_cmp_eq_f32 vcc, {v(R)}, {v(T + 3)}", "s_ff1_i32_b64 s3, vcc", "s_max_i32 s3, s3, 0", f"v_mov_b32 {v(T + 4)}, {v(T + 3)}",
        f"v_mov_b32 {v(T + 5)}, s3", f"s_lshl_b32 s4, {s(S_WAVE)}, 3", f"v_mov_b32 {v(T + 6)}, s4",
        f"ds_write_b64 {v(T + 6)}, {v(T + 4, 2)} offset:{L_BEST}", f"v_mov_b32 {v(T + 6)}, 0")
    H = V_ACC
    c.e(f"v_mul_f32 {v(MU)}, -{v(MU)}, {v(RS)}")
    c.e("s_waitcnt lgkmcnt(0)", "s_barrier", f"ds_read_b128 {v(V_U, 4)}, {v(T + 6)} offset:{L_BEST}", f"ds_read_b128 {v(V_U + 4, 4)}, {v(T + 6)} offset:{L_BEST + 16}")
    for j in range(16):
        c.e(f"v_fma_f32 {v(H + j)}, {v(V_X1 + j)}, {v(RS)}, {v(MU)}")
    for j in range(8):
        c.e(f"v_pk_fma_f32 {v(H + 2 * j, 2)}, {v(H + 2 * j, 2)}, {v(V_CB + 2 * j, 2)}, {v(V_SB + 2 * j, 2)}")
    c.e(f"v_max_f32 {v(T + 3)}, {v(V_U)}, {v(V_U + 2)}", f"v_max3_f32 {v(T + 3)}, {v(T + 3)}, {v(V_U + 4)}, {v(V_U + 6)}",
        f"v_mov_b32 {v(T + 4)}, 3")
    for w in (2, 1, 0):
        c.e(f"v_cmp_eq_f32 vcc, {v(V_U + 2 * w)}, {v(T + 3)}", "s_nop 1", f"v_cndmask_b32 {v(V_U + 7)}, {v(V_U + 7)}, {v(V_U + 2 * w + 1)}, vcc",
            f"v_cndmask_b32_e64 {v(T + 4)}, {v(T + 4)}, {w}, vcc")
    c.e("s_nop 0", f"v_readfirstlane_b32 {s(S_WB)}, {v(T + 4)}", f"v_readfirstlane_b32 {s(S_CB)}, {v(V_U + 7)}")
    c.e(f"s_cmp_lg_u32 {s(S_WB)}, {s(S_WAVE)}", f"s_cbranch_scc1 {name}_nopub")
    pb = Sec("pub")
    pb.e(f"s_and_b32 s4, {s(S_TAG)}, 0xffff", f"s_lshr_b32 s5, {s(S_TAG)}, 16", "s_mov_b32 s6, 0xffff0000")
    for j in range(8):
        pb.e(f"v_cvt_pk_bf16_f32 {v(T + 8)}, {v(H + 2 * j)}, {v(H + 2 * j + 1)}", f"v_lshl_or_b32 {v(V_U + 2 * j)}, {v(T + 8)}, 16, s4",
             f"v_and_b32 {v(T + 8)}, s6, {v(T + 8)}", f"v_or_b32 {v(V_U + 2 * j + 1)}, s5, {v(T + 8)}")
    pb.e(f"s_lshl_b32 s3, {s(S_QT)}, 11", f"s_lshl_b32 s4, {s(S_NT)}, 8", "s_add_u32 s3, s3, s4", f"s_add_u32 s3, s3, {SY_SEG}",
         f"v_lshlrev_b32 {v(T + 8)}, 5, {v(V_G)}", f"v_cmp_eq_u32 vcc, {s(S_CB)}, {v(V_C)}",
         f"s_lshl_b32 s4, {s(S_WB)}, 4", f"s_add_u32 s4, s4, {s(S_CB)}", f"v_mov_b32 {v(T + 4)}, {v(T + 3)}", f"v_mov_b32 {v(T + 5)}, s4",
         f"v_mov_b32 {v(T + 6)}, {s(S_TAG)}", f"v_mov_b32 {v(T + 7)}, {s(S_TAG)}", "s_mov_b64 exec, vcc")
    for n, o in enumerate((0, 16, 128, 144)):
        pb.e(f"buffer_store_dwordx4 {v(V_U + 4 * n, 4)}, {v(T + 8)}, {s(S_SY, 4)}, s3 offen offset:{o}{SC}")
    for n, o in enumerate((0, 16, 128, 144)):
        pb.e(f"ds_write_b128 {v(T + 8)}, {v(V_X1 + 4 * n, 4)} offset:{L_ROW + o}", f"ds_write_b128 {v(T + 8)}, {v(V_U + 4 * n, 4)} offset:{L_ROW + 256 + o}")
    pb.e(f"s_lshl_b32 s3, {s(S_QT)}, 4", f"s_add_u32 s3, s3, {SY_HDR}", f"s_cmp_eq_u32 {s(S_NT)}, 0", "s_cselect_b64 exec, 1, 0",
         f"v_mov_b32 {v(T + 9)}, 0", "s_nop 0", f"s_cbranch_scc0 {name}_nohdr",
         f"buffer_store_dwordx4 {v(T + 4, 4)}, {v(T + 9)}, {s(S_SY, 4)}, s3 offen{SC}", f"{name}_nohdr:", "s_mov_b64 exec, -1")
    o = Sec("outv")
    o.e(f"{name}_nopub:")
    for j in range(8):
        o.e(f"v_pk_fma_f32 {v(H + 2 * j, 2)}, {v(H + 2 * j, 2)}, {v(V_GB + 2 * j, 2)}, {v(V_X1 + 2 * j, 2)}")
    for j in range(8):
        o.e(f"v_cvt_pk_bf16_f32 {v(V_X + j)}, {v(H + 2 * j)}, {v(H + 2 * j + 1)}")
    o.e(f"v_and_b32 {v(V_A0)}, 31, {v(V_LANE)}", f"v_lshlrev_b32 {v(V_A0)}, 4, {v(V_A0)}", f"s_movk_i32 {s(S_T0)}, {SY_HDR:#x}")
    stamp(o, 4)
    h2 = poll(f"{name}_h2", [f"buffer_load_dwordx4 {v(T, 4)}, {v(V_A0)}, {s(S_SY, 4)}, {s(S_T0)} offen{SC}"],
              [f"v_cmp_eq_u32 vcc, {s(S_TAG)}, {v(T + 2)}"])
    g = Sec("win")
    g.e(f"v_mov_b32 {v(T + 3)}, {v(T)}")
    dpp_red(g, [T + 3], "v_max_f32")
    swap_red(g, [T + 3], "v_max_f32", sws=("v_permlane16_swap_b32",))
    g.e(f"v_cmp_eq_f32 vcc, {v(T)}, {v(T + 3)}", f"s_ff1_i32_b64 {s(S_WT)}, vcc", f"s_max_i32 {s(S_WT)}, {s(S_WT)}, 0",
        f"s_lshl_b32 {s(S_T0)}, {s(S_WT)}, 11", f"s_add_u32 {s(S_T0)}, {s(S_T0)}, {SY_SEG}", f"v_lshlrev_b32 {v(V_A0)}, 3, {v(V_TID)}",
        "s_mov_b32 s6, 0xffff", "s_lshr_b32 s3, s2, 3", "s_cmp_ge_u32 s3, 28", f"s_cbranch_scc1 {name}_nomlp")
    h3 = poll(f"{name}_h3", [f"buffer_load_dwordx2 {v(T + 4, 2)}, {v(V_A0)}, {s(S_SY, 4)}, {s(S_T0)} offen{SC}"],
              [f"v_and_b32 {v(T + 6)}, s6, {v(T + 4)}", f"v_lshl_or_b32 {v(T + 6)}, {v(T + 5)}, 16, {v(T + 6)}", f"v_cmp_eq_u32 vcc, {s(S_TAG)}, {v(T + 6)}"])
    m = Sec("mlp")
    stamp(m, 5)
    m.e(f"v_and_b32 {v(T + 4)}, 0xffff0000, {v(T + 4)}", f"v_and_b32 {v(T + 6)}, 0xffff0000, {v(T + 5)}")
    for mm in range(2):
        for j in range(4):
            d = v(V_U + 8 * mm + 2 * j, 2)
            m.e(f"v_pk_mul_f32 {d}, {v(V_GUF + 16 * mm + 2 * j, 2)}, {v(T + 4, 2)} op_sel_hi:[1,0]")
    for mm in range(2):
        for j in range(4):
            d = v(V_U + 8 * mm + 2 * j, 2)
            m.e(f"v_pk_fma_f32 {d}, {v(V_GUF + 16 * mm + 8 + 2 * j, 2)}, {v(T + 6, 2)}, {d} op_sel_hi:[1,0,1]")
    for sw, n in (("v_permlane32_swap_b32", 8), ("v_permlane16_swap_b32", 4)):
        m.e("s_nop 0")
        for j in range(n):
            m.e(f"{sw} {v(V_U + j)}, {v(V_U + n + j)}")
        for j in range(n):
            m.e(f"v_add_f32 {v(V_U + j)}, {v(V_U + j)}, {v(V_U + n + j)}")
    dpp_red(m, [V_U + j for j in range(4)], "v_add_f32")
    m.e(f"s_lshl_b32 s3, {s(S_WAVE)}, 6", f"v_add_u32 {v(T + 8)}, s3, {v(V_A1)}", f"ds_write_b128 {v(T + 8)}, {v(V_U, 4)} offset:{L_GU}",
        f"v_lshlrev_b32 {v(T + 8)}, 2, {v(V_LANE)}", "s_waitcnt lgkmcnt(0)", "s_barrier", f"ds_read_b32 {v(V_U)}, {v(T + 8)} offset:{L_GU}",
        "s_waitcnt lgkmcnt(0)")
    swap_red(m, [V_U], "v_add_f32")
    round_bf16(m, V_U, V_U + 1)
    m.e(f"v_mul_f32 {v(V_U + 1)}, {f2u(-LOG2E):#x}, {v(V_U)}", f"v_exp_f32 {v(V_U + 1)}, {v(V_U + 1)}",
        f"v_mov_b32_dpp {v(V_U + 2)}, {v(V_U)} row_ror:8 row_mask:0xf bank_mask:0xf", f"v_add_f32 {v(V_U + 1)}, 1.0, {v(V_U + 1)}",
        f"v_rcp_f32 {v(V_U + 1)}, {v(V_U + 1)}", "s_nop 0", f"v_mul_f32 {v(V_U)}, {v(V_U)}, {v(V_U + 1)}")
    round_bf16(m, V_U, V_U + 1)
    m.e(f"v_mul_f32 {v(V_U)}, {v(V_U)}, {v(V_U + 2)}")
    round_bf16(m, V_U, V_U + 1)
    m.e("s_nop 0")
    for r in range(8):
        m.e(f"v_readlane_b32 {s(S_GU + r)}, {v(V_U)}, {r}")
    m.e(f"s_cmp_ge_u32 {s(S_WAVE)}, 2", f"s_cbranch_scc1 {name}_nomlp")
    dn = Sec("down")
    for j in range(4):
        dn.e(f"v_mul_f32 {v(V_U + j)}, {s(S_GU)}, {v(DNF[j])}")
    for r in range(1, 8):
        for j in range(4):
            dn.e(f"v_fmac_f32 {v(V_U + j)}, {s(S_GU + r)}, {v(DNF[4 * r + j])}")
    dn.e("s_movk_i32 s6, 0xff", f"v_lshlrev_b32 {v(T + 8)}, 4, {v(V_TID)}", f"s_lshl_b32 s3, {s(S_CG)}, 11", f"s_add_u32 s3, s3, {SY_PART}")
    for j in range(4):
        dn.e(f"s_lshr_b32 s4, {s(S_TAG)}, {8 * j}", f"v_mov_b32 {v(T + 9)}, s4", f"v_bfi_b32 {v(V_U + j)}, s6, {v(T + 9)}, {v(V_U + j)}")
    dn.e(f"buffer_store_dwordx4 {v(V_U, 4)}, {v(T + 8)}, {s(S_SY, 4)}, s3 offen{SC}")
    z = Sec("fin")
    z.e(f"{name}_nomlp:")
    stamp(z, 6)
    z.e(f"s_cmp_eq_u32 {s(S_WT)}, {s(S_QT)}", f"s_cbranch_scc1 {name}_winner")
    st_out = [f"buffer_store_dwordx4 {v(V_X + 4 * n, 4)}, {v(V_XO)}, {s(S_OUT, 4)}, {s(S_XO)} offen offset:{64 * n}" for n in range(2)]
    z.ext(st_out)
    stamp(z, 7)
    stamp_out(z, 8, S_WAVE)
    z.e("s_endpgm")
    w0 = Sec("w0")
    w0.e(f"{name}_winner:")
    w0.e(f"v_lshrrev_b32 {v(T + 8)}, 4, {v(V_TID)}", f"v_lshlrev_b32 {v(T + 8)}, 11, {v(T + 8)}", f"v_lshl_add_u32 {v(V_A0)}, {v(V_C)}, 4, {v(T + 8)}",
         f"s_lshl_b32 s3, {s(S_NT)}, 8", f"s_add_u32 s3, s3, {SY_PART}", "s_mov_b32 s6, 0x0c0c0400", "s_mov_b32 s7, 0x05040100")
    PR = list(range(V_GUF, V_GUF + 48, 4)) + [V_GA, V_GA + 4]
    loads, chk = [], ["s_mov_b64 vcc, -1"]
    for n in range(14):
        loads += [f"s_add_u32 s4, s3, {n * 32768}", f"buffer_load_dwordx4 {v(PR[n], 4)}, {v(V_A0)}, {s(S_SY, 4)}, s4 offen{SC}"]
        chk += [f"v_perm_b32 {v(T + 8)}, {v(PR[n] + 1)}, {v(PR[n])}, s6", f"v_perm_b32 {v(T + 9)}, {v(PR[n] + 3)}, {v(PR[n] + 2)}, s6",
                f"v_perm_b32 {v(T + 8)}, {v(T + 9)}, {v(T + 8)}, s7", f"v_cmp_eq_u32 s[4:5], {s(S_TAG)}, {v(T + 8)}", "s_and_b64 vcc, vcc, s[4:5]"]
    h4 = poll(f"{name}_h4", loads, chk)
    y = Sec("y")
    for n in range(1, 14):
        for j in range(2):
            y.e(f"v_pk_add_f32 {v(PR[0] + 2 * j, 2)}, {v(PR[0] + 2 * j, 2)}, {v(PR[n] + 2 * j, 2)}")
    Y = PR[0]
    swap_red(y, [Y + j for j in range(4)], "v_add_f32")
    y.e(f"v_lshlrev_b32 {v(V_A0)}, 4, {v(V_C)}", f"s_lshl_b32 s3, {s(S_WAVE)}, 8", f"v_add_u32 {v(T + 8)}, s3, {v(V_A0)}",
        f"ds_write_b128 {v(T + 8)}, {v(Y, 4)} offset:{L_Y}")
    y.e(f"s_lshl_b32 s4, {s(S_NT)}, 8", f"s_add_u32 s4, s4, {5 * 2048}", f"buffer_load_dwordx4 {v(Y + 24, 4)}, {v(V_A0)}, {s(S_MOD, 4)}, s4 offen")
    y.e(f"v_cmp_ne_u32 vcc, {s(S_CB)}, {v(V_C)}", f"s_cmp_eq_u32 {s(S_WB)}, {s(S_WAVE)}", "s_cselect_b64 exec, vcc, -1")
    y.ext(st_out)
    y.e("s_mov_b64 exec, -1", "s_waitcnt lgkmcnt(0)", "s_barrier", f"s_cmp_lg_u32 {s(S_WAVE)}, 0", f"s_cbranch_scc1 {name}_done")
    u = Sec("upd")
    for n in range(4):
        u.e(f"ds_read_b128 {v(Y + 4 * n, 4)}, {v(V_A0)} offset:{L_Y + 256 * n}")
    u.e(f"ds_read_b128 {v(Y + 16, 4)}, {v(V_A0)} offset:{L_ROW}", f"ds_read_b128 {v(Y + 20, 4)}, {v(V_A0)} offset:{L_ROW + 256}")
    SG = T + 3
    round_bf16(u, SG, T + 8)
    u.e(f"v_mul_f32 {v(SG)}, {f2u(-LOG2E):#x}, {v(SG)}", f"v_exp_f32 {v(SG)}, {v(SG)}", "s_nop 0", f"v_add_f32 {v(SG)}, 1.0, {v(SG)}",
        f"v_rcp_f32 {v(SG)}, {v(SG)}", "s_nop 0")
    round_bf16(u, SG, T + 8)
    for j in range(4):
        r = Y + j
        u.e(f"v_add_f32 {v(r)}, {v(r)}, {v(r + 4)}", f"v_add_f32 {v(r + 8)}, {v(r + 8)}, {v(r + 12)}", f"v_add_f32 {v(r)}, {v(r)}, {v(r + 8)}")
        round_bf16(u, r, T + 8)
        u.e(f"v_mul_f32 {v(r)}, {v(r)}, {v(SG)}")
        round_bf16(u, r, T + 8)
        u.e(f"v_and_b32 {v(r + 20)}, 0xffff0000, {v(r + 20)}", f"v_add_f32 {v(r)}, {v(r)}, {v(r + 20)}")
        round_bf16(u, r, T + 8)
        u.e(f"v_fma_f32 {v(r)}, {v(r)}, {v(r + 24)}, {v(r + 16)}")
    u.e(f"v_cvt_pk_bf16_f32 {v(T + 8)}, {v(Y)}, {v(Y + 1)}", f"v_cvt_pk_bf16_f32 {v(T + 9)}, {v(Y + 2)}, {v(Y + 3)}",
        f"v_lshlrev_b32 {v(V_A0)}, 3, {v(V_C)}", f"s_lshl_b32 s3, {s(S_WB)}, 4", f"s_add_u32 s3, s3, {s(S_CB)}", "s_lshl_b32 s3, s3, 10",
        f"s_add_u32 s3, s3, {s(S_XO)}", "s_mov_b64 exec, 0xffff", f"buffer_store_dwordx2 {v(T + 8, 2)}, {v(V_A0)}, {s(S_OUT, 4)}, s3 offen",
        f"v_mov_b32 {v(T + 10)}, {s(S_TAG)}", f"v_mov_b32 {v(T + 11)}, 0", f"s_cmp_eq_u32 {s(S_NT)}, 0", f"s_cbranch_scc0 {name}_done",
        "s_mov_b64 exec, 1", f"buffer_store_dword {v(T + 10)}, {v(T + 11)}, {s(S_SY, 4)}, 0 offen offset:{SY_EPOCH}")
    d = Sec("done")
    d.e(f"{name}_done:", "s_mov_b64 exec, -1")
    stamp(d, 7)
    stamp_out(d, 8, S_WAVE)
    d.e("s_endpgm")
    secs = [p, k, e, h1, c, pb, o, h2, g, h3, m, dn, z, w0, h4, y, u, d]
    zz = Sec("zz")
    paths = [[p, k, e, h1, c, pb, o, h2, g, h3, m, dn, z], [p, k, e, h1, c, o, h2, g, z], [p, k, e, h1, h1, c, pb, o, h2, h2, g, h3, h3, m, dn, w0, h4, h4, y, u, d],
             [p, k, e, h1, c, o, h2, g, w0, h4, y, d], [p, k, e, h1, c, o, h2, g, h3, m, w0, h4, y, d]]
    insert_waits(paths)
    errs = []
    for pa in paths:
        errs += check_hazards(pa, name)
    return secs, sorted(set(errs)), dict(vgpr=512, accum=256, grid=256, block=256, lds=65536, sgpr=102)


if __name__ == "__main__":
    secs, errs, m = build()
    print('\n'.join(errs))
    print(kernel_text("out_kernel", secs))
```

```python
from common import *


def entry(sec, name, nwg):
    sec.e(f"s_cmp_lt_u32 s2, {nwg}", f"s_cbranch_scc1 {name}_go", "s_endpgm", f"{name}_go:")


def finish(name, secs, meta):
    insert_waits([secs])
    return secs, check_hazards(secs, name), meta


def unpack(sec, dst, src, n):
    for k in range(n):
        sec.e(f"v_lshlrev_b32 {v(dst + 2 * k)}, 16, {v(src + k)}", f"v_and_b32 {v(dst + 2 * k + 1)}, 0xffff0000, {v(src + k)}")


def round_bf16(sec, r, t):
    sec.e(f"v_cvt_pk_bf16_f32 {v(t)}, {v(r)}, {v(r)}", f"v_lshlrev_b32 {v(r)}, 16, {v(t)}")


def row16_reduce(sec, r, op="v_add_f32"):
    for ctl in ("quad_perm:[1,0,3,2]", "quad_perm:[2,3,0,1]", "row_half_mirror", "row_mirror"):
        sec.e("s_nop 1", f"{op}_dpp {v(r)}, {v(r)}, {v(r)} {ctl} row_mask:0xf bank_mask:0xf")


def xrow_reduce(sec, r, t, op="v_add_f32"):
    for sw in ("v_permlane16_swap_b32", "v_permlane32_swap_b32"):
        sec.e(f"v_mov_b32 {v(t)}, {v(r)}", "s_nop 1", f"{sw} {v(r)}, {v(t)}", "s_nop 0", f"{op} {v(r)}, {v(r)}, {v(t)}")


def build_mod(name="mod_kernel"):
    p = Sec(name)
    entry(p, name, 48)
    p.e(f"s_load_dwordx4 s[4:7], s[0:1], {ARG['c']}", f"s_load_dwordx2 s[20:21], s[0:1], {ARG['ws']}")
    p.e("v_and_b32 v1, 7, v0", "v_lshrrev_b32 v2, 3, v0", "s_waitcnt lgkmcnt(0)")
    srd(p, 8, 4, size=1024)
    srd(p, 12, 6, size=512 * 6144)
    srd(p, 16, 20, off=WS_MOD, size=3072 * 4)
    p.e("v_lshlrev_b32 v3, 5, v2", "buffer_load_dwordx4 v[8:11], v3, s[8:11], 0 offen", "buffer_load_dwordx4 v[12:15], v3, s[8:11], 0 offen offset:16")
    p.e("s_mov_b32 s22, 98304", "v_mul_lo_u32 v4, v2, s22", "v_lshl_add_u32 v4, v1, 4, v4", "s_lshl_b32 s23, s2, 7")
    for r in range(16):
        p.e(f"buffer_load_dwordx4 {v(64 + 4 * r, 4)}, v4, s[12:15], s23 offen", "s_add_u32 s23, s23, 6144")
    unpack(p, 16, 8, 8)
    for r in range(16):
        p.e(f"v_mul_f32 v5, {f2u(-LOG2E):#x}, {v(16 + r)}", "v_exp_f32 v5, v5", "s_nop 0", "v_add_f32 v5, 1.0, v5", "v_rcp_f32 v5, v5", "s_nop 0",
            f"v_mul_f32 {v(16 + r)}, v5, {v(16 + r)}")
        round_bf16(p, 16 + r, 5)
    for e in range(8):
        p.e(f"v_mov_b32 {v(32 + e)}, 0")
    for r in range(16):
        unpack(p, 40, 64 + 4 * r, 4)
        for e in range(8):
            p.e(f"v_fmac_f32 {v(32 + e)}, {v(16 + r)}, {v(40 + e)}")
    p.e("v_lshlrev_b32 v5, 8, v2", "v_lshl_add_u32 v5, v1, 5, v5", "ds_write_b128 v5, v[32:35]", "ds_write_b128 v5, v[36:39] offset:16",
        "s_waitcnt lgkmcnt(0)", "s_barrier")
    p.e("v_cmp_gt_u32 vcc, 64, v0", "s_and_saveexec_b64 s[24:25], vcc", f"s_cbranch_execz {name}_end")
    p.e("v_lshlrev_b32 v5, 2, v0")
    for k in range(32):
        p.e(f"ds_read_b32 {v(64 + k)}, v5 offset:{k * 256}")
    p.e("s_waitcnt lgkmcnt(0)")
    for k in range(1, 32):
        p.e(f"v_add_f32 v64, v64, {v(64 + k)}")
    round_bf16(p, 64, 6)
    p.e("s_lshl_b32 s23, s2, 8", "buffer_store_dword v64, v5, s[16:19], s23 offen")
    p.e(f"{name}_end:", "s_endpgm")
    return finish(name, [p], dict(vgpr=128, accum=128, grid=48, block=256, lds=8192))


def build_h(name="h_kernel"):
    p = Sec(name)
    entry(p, name, 256)
    p.e(f"s_load_dwordx2 s[4:5], s[0:1], {ARG['x']}", f"s_load_dwordx2 s[20:21], s[0:1], {ARG['ws']}")
    p.e("v_and_b32 v1, 63, v0", "v_lshrrev_b32 v2, 6, v0", "s_nop 0", "v_readfirstlane_b32 s22, v2", "s_waitcnt lgkmcnt(0)")
    srd(p, 8, 4, size=2 * MB)
    srd(p, 12, 20, off=WS_MOD, size=3072 * 4)
    srd(p, 16, 20, off=WS_H, size=2 * MB)
    p.e("s_lshl_b32 s23, s2, 3", "s_lshl_b32 s24, s22, 1", "s_add_u32 s23, s23, s24", "s_lshl_b32 s24, s23, 10")
    p.e("v_lshlrev_b32 v3, 4, v1", "v_lshlrev_b32 v4, 5, v1")
    p.e("buffer_load_dwordx4 v[8:11], v3, s[8:11], s24 offen", "buffer_load_dwordx4 v[12:15], v3, s[8:11], s24 offen offset:1024")
    p.e("buffer_load_dwordx4 v[16:19], v4, s[12:15], 0 offen", "buffer_load_dwordx4 v[20:23], v4, s[12:15], 0 offen offset:16",
        "buffer_load_dwordx4 v[24:27], v4, s[12:15], 0 offen offset:2048", "buffer_load_dwordx4 v[28:31], v4, s[12:15], 0 offen offset:2064")
    p.e("v_lshrrev_b32 v5, 2, v1", "v_lshlrev_b32 v5, 10, v5", "v_and_b32 v6, 3, v1", "v_lshl_add_u32 v5, v6, 8, v5")
    p.e("s_lshr_b32 s25, s23, 4", "s_lshl_b32 s25, s25, 14", "s_and_b32 s26, s23, 15", "s_lshl_b32 s26, s26, 4", "s_add_u32 s25, s25, s26")
    for e in range(8):
        p.e(f"v_add_f32 {v(24 + e)}, 1.0, {v(24 + e)}")
        round_bf16(p, 24 + e, 6)
        p.e(f"v_mul_f32 {v(24 + e)}, {f2u(QSCALE):#x}, {v(24 + e)}", f"v_mul_f32 {v(16 + e)}, {f2u(QSCALE):#x}, {v(16 + e)}")
    for r in range(2):
        unpack(p, 32, 8 + 4 * r, 4)
        p.e("v_add_f32 v40, v32, v33")
        for e in range(2, 8):
            p.e(f"v_add_f32 v40, v40, {v(32 + e)}")
        row16_reduce(p, 40)
        xrow_reduce(p, 40, 41)
        p.e(f"v_mul_f32 v40, {f2u(1 / 512):#x}, v40")
        for e in range(8):
            p.e(f"v_sub_f32 {v(32 + e)}, {v(32 + e)}, v40")
        p.e("v_mul_f32 v40, v32, v32")
        for e in range(1, 8):
            p.e(f"v_fmac_f32 v40, {v(32 + e)}, {v(32 + e)}")
        row16_reduce(p, 40)
        xrow_reduce(p, 40, 41)
        p.e(f"v_mov_b32 v41, {f2u(1e-5):#x}", f"v_fmac_f32 v41, {f2u(1 / 512):#x}, v40", "v_rsq_f32 v41, v41", "s_nop 0")
        for e in range(8):
            p.e(f"v_mul_f32 {v(32 + e)}, v41, {v(32 + e)}", f"v_fma_f32 {v(32 + e)}, {v(32 + e)}, {v(24 + e)}, {v(16 + e)}")
        for q in range(4):
            p.e(f"v_cvt_pk_bf16_f32 {v(44 + 4 * r + q)}, {v(32 + 2 * q)}, {v(33 + 2 * q)}")
        p.e(f"buffer_store_dwordx4 {v(44 + 4 * r, 4)}, v5, s[16:19], s25 offen offset:{16 * r}")
    p.e("s_endpgm")
    return finish(name, [p], dict(vgpr=64, accum=64, grid=256, block=256, lds=0))


def build_wot(name="wot_kernel"):
    p = Sec(name)
    entry(p, name, 256)
    p.e(f"s_load_dwordx2 s[4:5], s[0:1], {ARG['wo']}", f"s_load_dwordx2 s[20:21], s[0:1], {ARG['ws']}")
    p.e("v_and_b32 v1, 63, v0", "v_lshrrev_b32 v2, 6, v0", "s_nop 0", "v_readfirstlane_b32 s22, v2", "s_waitcnt lgkmcnt(0)")
    srd(p, 8, 4, size=4 * MB)
    srd(p, 16, 20, off=WS_WOT, size=4 * MB)
    p.e("v_lshrrev_b32 v3, 5, v1", "v_lshlrev_b32 v3, 10, v3", "v_and_b32 v4, 31, v1", "v_lshl_add_u32 v3, v4, 4, v3")
    p.e("s_lshr_b32 s23, s2, 1", "s_lshl_b32 s23, s23, 15", "s_and_b32 s24, s2, 1", "s_lshl_b32 s25, s24, 9", "s_add_u32 s23, s23, s25",
        "s_lshl_b32 s25, s22, 13", "s_add_u32 s23, s23, s25", "s_lshl_b32 s26, s22, 12")
    for k in range(4):
        p.e(f"s_add_u32 m0, s26, {k * 1024}", f"s_add_u32 s27, s23, {k * 2048}", "buffer_load_dwordx4 v3, s[8:11], s27 offen lds")
    p.e("v_lshrrev_b32 v5, 4, v1", "v_and_b32 v6, 15, v1", "v_lshrrev_b32 v7, 2, v6", "v_lshl_add_u32 v7, v5, 2, v7", "v_lshlrev_b32 v7, 9, v7",
        "v_and_b32 v6, 3, v6", "v_lshl_add_u32 v7, v6, 4, v7", "s_lshl_b32 s27, s22, 7", "v_add_u32 v7, s27, v7")
    p.e("s_waitcnt vmcnt(0)", "s_barrier")
    for n in range(4):
        for t in range(2):
            p.e(f"ds_read_b64_tr_b16 {v(8 + 4 * n + 2 * t, 2)}, v7 offset:{t * 8192 + (n >> 1) * 64 + (n & 1) * 8}")
    p.e("s_lshl_b32 s24, s24, 2", "s_add_u32 s24, s24, s22", "s_lshl_b32 s24, s24, 19", "s_lshr_b32 s23, s2, 1", "s_lshl_b32 s23, s23, 12",
        "s_add_u32 s24, s24, s23", "v_lshlrev_b32 v3, 4, v1")
    for n in range(4):
        p.e(f"buffer_store_dwordx4 {v(8 + 4 * n, 4)}, v3, s[16:19], s24 offen offset:{n * 1024}")
    p.e("s_endpgm")
    return finish(name, [p], dict(vgpr=32, accum=32, grid=256, block=256, lds=16384))
```

```python
from build import *
import k_kv, k_small, k_attn, k_out, sys
def st(fn):
    def f(name):
        OPT.update(stamp=True)
        r = fn(name)
        OPT.update(stamp=False)
        return r
    return f
pre = [("mod_kernel", k_small.build_mod), ("h_kernel", k_small.build_h), ("wot_kernel", k_small.build_wot), ("kv_kernel", k_kv.build), ("attn_kernel", k_attn.build)]
open('v1.s', 'w').write(assemble(pre + [("out_kernel", k_out.build)]))
open('v1_st.s', 'w').write(assemble(pre + [("out_kernel", st(k_out.build))]))
```

```python
import re, os, json, hashlib

CACHE = ".sched"

REG_RE = re.compile(r'^(-|abs\()?([vas])(\d+)\)?$')
RNG_RE = re.compile(r'^(-)?([vas])\[(\d+):(\d+)\]$')
TRANS = ('v_exp_f32', 'v_log_f32', 'v_rcp_f32', 'v_rsq_f32', 'v_sqrt_f32', 'v_sin_f32', 'v_cos_f32')


def v(i, n=1):
    return f"v{i}" if n == 1 else f"v[{i}:{i+n-1}]"


def a(i, n=1):
    return f"a{i}" if n == 1 else f"a[{i}:{i+n-1}]"


def s(i, n=1):
    return f"s{i}" if n == 1 else f"s[{i}:{i+n-1}]"


def regs_of(tok):
    tok = tok.strip()
    m = REG_RE.match(tok)
    if m:
        return [m.group(2) + m.group(3)]
    m = RNG_RE.match(tok)
    if m:
        return [m.group(2) + str(i) for i in range(int(m.group(3)), int(m.group(4)) + 1)]
    if tok == 'vcc':
        return ['vcc']
    if tok in ('m0', 'exec', 'scc', 'vcc_lo', 'vcc_hi', 'exec_lo', 'exec_hi'):
        return [tok.split('_')[0]]
    return []


class I:
    __slots__ = ('text', 'op', 'kind', 'rd', 'wr', 'cost', 'srcc', 'auto', 'tag')

    def __init__(self, text, tag=None):
        self.text = text.strip()
        self.tag = tag
        self.auto = False
        self.srcc = []
        t = self.text.split(';')[0].strip()
        if t.endswith(':'):
            self.op, self.kind, self.rd, self.wr, self.cost = 'label', 'label', [], [], 0
            return
        parts = t.split(None, 1)
        op = parts[0]
        self.op = op
        ops = []
        if len(parts) > 1:
            for tok in parts[1].split(','):
                ops.extend(tok.strip().split())
        R = [regs_of(o) for o in ops]
        flat = lambda L: [x for y in L for x in y]
        rd, wr = [], []
        cost = 4
        if op.startswith('v_mfma'):
            kind = 'mfma'
            wr = R[0]
            rd = flat(R[1:4])
            self.srcc = R[3]
            cost = 8
        elif op.startswith('ds_read') or op.startswith('ds_bpermute') or op.startswith('ds_swizzle') or op.startswith('ds_permute'):
            kind = 'dsr'
            wr = R[0]
            rd = flat(R[1:])
        elif op.startswith('ds_'):
            kind = 'dsw'
            rd = flat(R)
            if '_rtn' in op:
                kind = 'dsr'
                wr = R[0]
                rd = flat(R[1:])
        elif op.startswith('buffer_load') or op.startswith('global_load'):
            if 'lds' in ops or '_lds_' in op:
                kind = 'dma'
                rd = flat(R) + ['m0']
            else:
                kind = 'vld'
                wr = R[0]
                rd = flat(R[1:])
        elif op.startswith('buffer_store') or op.startswith('global_store'):
            kind = 'vst'
            rd = flat(R)
        elif op.startswith('buffer_atomic') or op.startswith('global_atomic'):
            rd = flat(R)
            if 'sc0' in ops:
                kind = 'vld'
                wr = R[0]
            else:
                kind = 'vst'
        elif op.startswith('buffer_wbl2') or op.startswith('buffer_inv'):
            kind = 'vst'
        elif op.startswith('s_load') or op.startswith('s_memtime') or op.startswith('s_memrealtime') or op.startswith('s_buffer_load'):
            kind = 'smem'
            wr = R[0]
            rd = flat(R[1:])
        elif op == 's_waitcnt':
            kind = 'wait'
        elif op == 's_barrier':
            kind = 'barrier'
        elif op == 's_nop':
            kind = 'nop'
        elif op.startswith('s_cbranch') or op in ('s_branch', 's_endpgm', 's_setpc_b64'):
            kind = 'branch'
            rd = flat(R)
        elif op.startswith('s_cmp') or op.startswith('s_bitcmp'):
            kind = 'salu'
            rd = flat(R)
            wr = ['scc']
        elif op.startswith('s_'):
            kind = 'salu'
            if op in ('s_setprio', 's_sleep', 's_sendmsg'):
                pass
            else:
                wr = R[0]
                rd = flat(R[1:])
                if op.startswith('s_addk') or op.startswith('s_mulk') or op.startswith('s_cmov'):
                    rd = rd + R[0]
                if 'saveexec' in op:
                    wr = wr + ['exec']
        elif op.startswith('v_'):
            kind = 'valu'
            if op.startswith('v_cmp'):
                wr = R[0]
                rd = flat(R[1:])
                if op.startswith('v_cmpx'):
                    wr = wr + ['exec']
            elif op.startswith('v_permlane') and 'swap' in op:
                wr = R[0] + R[1]
                rd = R[0] + R[1]
            elif op.endswith('_co_u32') or op.startswith('v_add_co') or op.startswith('v_addc_co') or op.startswith('v_sub_co'):
                wr = R[0] + R[1]
                rd = flat(R[2:])
            else:
                wr = R[0]
                rd = flat(R[1:])
                if op.startswith('v_fmac') or op.startswith('v_dot2c') or op.startswith('v_writelane') or 'dpp' in self.text or 'row_' in self.text or 'quad_perm' in self.text:
                    rd = rd + R[0]
            if any(op.startswith(x) for x in TRANS):
                cost = 8
        else:
            raise ValueError("unknown op " + op)
        self.kind, self.rd, self.wr, self.cost = kind, rd, wr, cost

    def is_trans(self):
        return any(self.op.startswith(x) for x in TRANS)

    def states(self):
        if self.kind == 'label':
            return 0
        if self.kind == 'nop':
            return int(self.text.split(';')[0].split()[1]) + 1
        return 1

    def __repr__(self):
        return self.text


class Sec:
    def __init__(self, name):
        self.name = name
        self.ins = []

    def e(self, *texts):
        for t in texts:
            if isinstance(t, I):
                self.ins.append(t)
            else:
                for line in t.split('\n'):
                    if line.strip():
                        self.ins.append(I(line))
        return self

    def ext(self, lst):
        for t in lst:
            self.e(t)
        return self

    def text(self):
        out = []
        for i in self.ins:
            out.append(i.text if i.kind == 'label' else '    ' + i.text)
        return '\n'.join(out)


class F:
    def __init__(self, texts, lo=-1, hi=10**9, stream=None, cost=None, tail=False):
        if isinstance(texts, (str, I)):
            texts = [texts]
        self.ins = [t if isinstance(t, I) else I(t) for t in texts]
        self.lo, self.hi, self.stream, self.tail = lo, hi, stream, tail
        self.cost = cost if cost is not None else sum(i.cost for i in self.ins)


def interleave(mfmas, fillers, budget=8, beam=300, lazy=()):
    n = len(mfmas)
    streams = {}
    for k, f in enumerate(fillers):
        streams.setdefault(f.stream if f.stream is not None else ('_', k), []).append(f)
    sts = list(streams.values())
    for st in sts:
        for f in st:
            f.hi = min(f.hi, n - 1)
        for k in range(len(st) - 2, -1, -1):
            st[k].hi = min(st[k].hi, st[k + 1].hi)
        for k in range(1, len(st)):
            st[k].lo = max(st[k].lo, st[k - 1].lo)
        for f in st:
            assert f.lo <= f.hi, (f.ins, f.lo, f.hi)
    ns = len(sts)
    ckey = hashlib.sha1(repr((n, budget, beam, [[(f.lo, f.hi, f.cost) for f in st] for st in sts])).encode()).hexdigest()
    cfile = os.path.join(CACHE, ckey)
    if os.path.exists(cfile):
        cost, gaps = json.load(open(cfile))
        return _emit(mfmas, sts, gaps, cost, fillers)
    rem = [[0] * (len(st) + 1) for st in sts]
    for a_, st in enumerate(sts):
        for k in range(len(st) - 1, -1, -1):
            rem[a_][k] = rem[a_][k + 1] + st[k].cost
    late = [0] * (n + 2)
    for st in sts:
        for f in st:
            late[max(f.lo, 0)] += f.cost
    for g in range(n - 1, -1, -1):
        late[g] += late[g + 1]
    beamset = {tuple([0] * ns): (0, 0, None)}
    for g in range(-1, n):
        nxt = {}
        free = budget if g >= 0 else 0
        left = n - 1 - g
        for pos, (cost, pen, back) in beamset.items():
            p = list(pos)
            c = 0
            seq = []
            for a_, st in enumerate(sts):
                k = p[a_]
                last = k
                while last < len(st) and st[last].hi <= g:
                    last += 1
                while k < last:
                    c += st[k].cost
                    seq.append(a_)
                    k += 1
                p[a_] = k
            stack = [(tuple(p), c, tuple(seq), 0)]
            seen = set()
            total = sum(rem[a_][pos[a_]] for a_ in range(ns))
            over = total > budget * (left + 1)
            while stack:
                q, c2, sq, start = stack.pop()
                if q in seen:
                    continue
                seen.add(q)
                r = total - c2
                ncost = cost + max(free, c2)
                npen = pen + sum(min(sts[a_][q[a_]].hi - g, 64) < 4 for a_ in range(ns) if q[a_] < len(sts[a_]))
                key = (ncost + max(r, budget * left), npen + r * 1e-3)
                if q not in nxt or key < nxt[q][3]:
                    nxt[q] = (ncost, npen, (back, sq), key)
                if g < 0 or c2 >= (free + 4 if over else free):
                    continue
                for a_ in range(ns):
                    k = q[a_]
                    if k < len(sts[a_]) and sts[a_][k].lo <= g and c2 + sts[a_][k].cost <= free + 8:
                        q2 = list(q)
                        q2[a_] += 1
                        stack.append((tuple(q2), c2 + sts[a_][k].cost, sq + (a_,), a_))
        best = sorted(nxt.items(), key=lambda kv: kv[1][3])[:beam]
        beamset = {k: val[:3] for k, val in best}
    end = tuple(len(st) for st in sts)
    cost, pen, back = beamset[end]
    gaps = []
    while back is not None:
        gaps.append(back[1])
        back = back[0]
    gaps.reverse()
    os.makedirs(CACHE, exist_ok=True)
    json.dump([cost, [list(g) for g in gaps]], open(cfile, 'w'))
    return _emit(mfmas, sts, gaps, cost, fillers)


def _emit(mfmas, sts, gaps, cost, fillers):
    n = len(mfmas)
    out = []
    p = [0] * len(sts)
    for g, sq in enumerate(gaps, start=-1):
        if g >= 0:
            out.append(mfmas[g] if isinstance(mfmas[g], I) else I(mfmas[g]))
        tails = []
        for a_ in sq:
            f = sts[a_][p[a_]]
            p[a_] += 1
            (tails if f.tail else out).extend(f.ins)
        out.extend(tails)
    STATS.append((n, sum(f.cost for f in fillers), cost + 8 * n))
    return out


STATS = []


def grp(text, name, first=False):
    return I(text, tag=('grp', name, first))


def need(name, back=0, lg=None):
    i = I("s_waitcnt vmcnt(63)" + (f" lgkmcnt({lg})" if lg is not None else ""), tag=('need', name, back, lg))
    return i


def resolve_needs(paths):
    best = {}
    for path in paths:
        ops, inst = [], {}
        for sec in path:
            for ins in sec.ins:
                if ins.kind in ('vld', 'vst', 'dma'):
                    key = None
                    if ins.tag and ins.tag[0] == 'grp':
                        if ins.tag[2]:
                            inst[ins.tag[1]] = inst.get(ins.tag[1], -1) + 1
                        key = (ins.tag[1], inst[ins.tag[1]])
                    ops.append(key)
                elif ins.kind == 'wait' and ins.tag and ins.tag[0] == 'need':
                    n = 63
                    names = ins.tag[1] if isinstance(ins.tag[1], (list, tuple)) else [ins.tag[1]]
                    backs = ins.tag[2] if isinstance(ins.tag[2], (list, tuple)) else [ins.tag[2]] * len(names)
                    for nm, bk in zip(names, backs):
                        tgt = inst.get(nm, -1) - bk
                        for k in range(len(ops) - 1, -1, -1):
                            if ops[k] is not None and ops[k][0] == nm and ops[k][1] <= tgt:
                                n = min(n, len(ops) - 1 - k)
                                break
                    best[id(ins)] = (ins, min(n, best.get(id(ins), (None, 63))[1]))
    for ins, n in best.values():
        ins.text = f"s_waitcnt vmcnt({n})" + (f" lgkmcnt({ins.tag[3]})" if ins.tag[3] is not None else "")


def parse_wait(text):
    vm = re.search(r'vmcnt\((\d+)\)', text)
    lg = re.search(r'lgkmcnt\((\d+)\)', text)
    return (int(vm.group(1)) if vm else None, int(lg.group(1)) if lg else None)


def _mkwait(vm, lg):
    t = 's_waitcnt'
    if vm is not None:
        t += f' vmcnt({vm})'
    if lg is not None:
        t += f' lgkmcnt({lg})'
    return t


def insert_waits(paths, lds_age=150, vm_age=10**9):
    changed = True
    while changed:
        changed = False
        for path in paths:
            if _one_pass(path, lds_age, vm_age):
                changed = True


def _apply_wait(text, lq, vq):
    vm, lg = parse_wait(text)
    if vm is not None and vm < len(vq):
        vq = vq[len(vq) - vm:] if vm else []
    if lg is not None:
        if lg == 0:
            lq = []
        elif not any(e[2] == 'smem' for e in lq) and lg < len(lq):
            lq = lq[len(lq) - lg:]
    return lq, vq


def _one_pass(path, lds_age, vm_age):
    lq, vq = [], []
    now = 0
    changed = False
    for sec in path:
        k = 0
        while k < len(sec.ins):
            ins = sec.ins[k]
            if ins.kind == 'wait':
                lq, vq = _apply_wait(ins.text, lq, vq)
            need_l = need_v = None
            if lq or vq:
                touched = set(ins.rd) | set(ins.wr)
                for idx, e in enumerate(lq):
                    if e[0] & touched:
                        need_l = len(lq) - 1 - idx
                for idx, e in enumerate(vq):
                    if e[0] & touched:
                        need_v = len(vq) - 1 - idx
            if need_l is not None or need_v is not None:
                if need_l is not None:
                    if any(e[2] == 'smem' for e in lq):
                        need_l = 0
                    young = sum(1 for e in lq if now - e[1] < lds_age)
                    need_l = min(need_l, young, 15)
                if need_v is not None:
                    young = sum(1 for e in vq if now - e[1] < vm_age)
                    need_v = min(need_v, young, 63)
                prev = sec.ins[k - 1] if k > 0 else None
                if prev is not None and prev.kind == 'wait' and prev.auto:
                    pv, pl = parse_wait(prev.text)
                    nv = need_v if pv is None else (pv if need_v is None else min(pv, need_v))
                    nl = need_l if pl is None else (pl if need_l is None else min(pl, need_l))
                    w = I(_mkwait(nv, nl))
                    w.auto = True
                    sec.ins[k - 1] = w
                else:
                    w = I(_mkwait(need_v, need_l))
                    w.auto = True
                    sec.ins.insert(k, w)
                    k += 1
                lq, vq = _apply_wait(w.text, lq, vq)
                changed = True
            if ins.kind == 'dsr':
                lq.append((set(ins.wr), now, 'ds'))
            elif ins.kind == 'dsw':
                lq.append((set(), now, 'ds'))
            elif ins.kind == 'smem':
                lq.append((set(ins.wr), now, 'smem'))
            elif ins.kind == 'vld':
                vq.append((set(ins.wr), now, 'vm'))
            elif ins.kind in ('vst', 'dma'):
                vq.append((set(), now, 'vm'))
            now += 16 if ins.kind == 'mfma' else (ins.cost if ins.kind != 'label' else 0)
            k += 1
    return changed


def check_hazards(path, name='', where=None):
    seq = [i for sec in path for i in sec.ins if i.kind != 'label']
    errs = []
    W = 24
    for k, c in enumerate(seq):
        dist = 0
        for j in range(k - 1, max(-1, k - W), -1):
            p = seq[j]
            need = 0
            why = ''
            pw, cr, cw = set(p.wr), set(c.rd), set(c.wr)
            vec_c = c.kind in ('valu', 'dsr', 'dsw', 'vld', 'vst', 'dma')
            if p.kind == 'valu':
                pv = {r for r in pw if r[0] in 'va' and r != 'vcc'}
                ps = {r for r in pw if r[0] == 's' or r == 'vcc'}
                if c.kind == 'mfma' and pv & cr:
                    need, why = 2, 'valu->mfma'
                if p.is_trans() and c.kind == 'valu' and not c.is_trans() and pv & cr:
                    need, why = max(need, 1), 'trans->valu'
                if c.op.startswith('v_permlane') and pv & cr:
                    need, why = max(need, 2), 'valu->permlane'
                if c.op.startswith(('v_readfirstlane', 'v_readlane')) and pv & cr:
                    need, why = max(need, 1), 'valu->readlane'
                if c.kind == 'valu' and ('dpp' in c.text or 'row_' in c.text or 'quad_perm' in c.text) and pv & cr:
                    need, why = max(need, 2), 'valu->dpp'
                if ps & cr and c.kind in ('vld', 'vst', 'dma'):
                    need, why = max(need, 5), 'valu sgpr->vmem'
                if ps & cr and c.kind == 'valu':
                    need, why = max(need, 2), 'valu sgpr->valu'
                if ps & cr and c.op.startswith(('v_readlane', 'v_writelane')):
                    need, why = max(need, 4), 'valu sgpr->lane select'
                if 'exec' in pw and c.kind == 'mfma':
                    need, why = max(need, 4), 'valu exec->mfma'
            if p.kind == 'salu' and 'm0' in pw and c.kind == 'dma':
                need, why = 1, 'm0->dma'
            if p.kind == 'mfma':
                big = '32x32' in p.op
                d_val = 12 if big else 8
                if vec_c and pw & (cr | cw):
                    need, why = d_val, 'mfma D->vector'
                if c.kind == 'mfma':
                    ab = set(c.rd) - set(c.srcc) if set(c.srcc) != pw else set(regs_of(c.text.split(',')[1].strip())) | set(regs_of(c.text.split(',')[2].strip()))
                    ab = set(regs_of(c.text.split(',')[1].strip())) | set(regs_of(c.text.split(',')[2].strip()))
                    if pw & ab:
                        need, why = d_val, 'mfma D->mfma AB'
                    elif pw & set(c.srcc) and pw != set(c.srcc):
                        need, why = (10 if big else 6), 'mfma D->mfma C partial'
                if c.kind == 'valu' and set(p.srcc) & cw and not (pw & cw):
                    need, why = max(need, 7 if big else 3), 'mfma C WAR'
            if p.kind == 'vst' and ('x4' in p.op or 'x3' in p.op) and c.kind in ('valu',):
                data = set(regs_of(p.text.split()[1].rstrip(','))) if p.op.startswith('buffer') else set(regs_of(p.text.split(',')[1].strip()))
                if data & cw:
                    need, why = 2, 'store data WAR'
            if need > dist:
                errs.append(f"{name}: {why} needs {need} has {dist}: [{p.text}] -> [{c.text}]")
                if where is not None:
                    where[id(c)] = max(where.get(id(c), 0), need - dist)
            dist += p.states()
            if dist >= 20:
                break
    return errs


def kernel_text(name, secs):
    return f".p2align 8\n.type {name},@function\n{name}:\n" + '\n'.join(x.text() for x in secs) + "\n"


def kernel_desc(name, vgpr, accum, sgpr=96):
    return (f".amdhsa_kernel {name}\n  .amdhsa_next_free_vgpr {vgpr}\n  .amdhsa_next_free_sgpr {sgpr}\n"
            f"  .amdhsa_accum_offset {accum}\n  .amdhsa_group_segment_fixed_size 0\n  .amdhsa_kernarg_size 128\n"
            "  .amdhsa_user_sgpr_count 2\n  .amdhsa_user_sgpr_kernarg_segment_ptr 1\n"
            "  .amdhsa_system_sgpr_workgroup_id_x 1\n.end_amdhsa_kernel\n")


def fix_hazards(paths):
    total = 0
    while True:
        where = {}
        for pa in paths:
            check_hazards(pa, where=where)
        if not where:
            return total
        done = set()
        for pa in paths:
            for sec in pa:
                if id(sec) in done:
                    continue
                done.add(id(sec))
                out = []
                for i in sec.ins:
                    if id(i) in where:
                        out.append(I(f"s_nop {where[id(i)] - 1}"))
                        total += where[id(i)]
                    out.append(i)
                sec.ins = out


SCC_W = ('s_add_', 's_addc', 's_sub_', 's_subb', 's_and_', 's_or_', 's_xor_', 's_lshl_', 's_lshr_', 's_ashr', 's_cmp', 's_bitcmp', 's_min_', 's_max_',
         's_andn2', 's_orn2', 's_not_', 's_bfe', 's_addk', 's_abs', 's_lshl1', 's_lshl2', 's_lshl3', 's_lshl4', 's_bcnt', 's_nand', 's_nor', 's_xnor')


def check_scc(path):
    errs, last = [], None
    for sec in path:
        for i in sec.ins:
            if i.op.startswith(('s_cselect', 's_cbranch_scc', 's_cmov')):
                if last is None or not (last.op.startswith(('s_cmp', 's_bitcmp')) or (last.op == 's_sub_u32' and i.op.startswith('s_cbranch'))):
                    errs.append(f"scc: [{last}] -> [{i}]")
            if i.op.startswith('s_addc') and (last is None or last.op != 's_add_u32'):
                errs.append(f"scc: [{last}] -> [{i}]")
            if i.op.startswith(SCC_W) or 'saveexec' in i.op:
                last = i
    return errs


class Timeline:
    def __init__(self, name, mfmas):
        self.name, self.ms, self.fl, self.cuts = name, mfmas, [], {}

    def add(self, texts, lo, hi, stream, cost=None):
        self.fl.append(F(texts, lo, hi, stream, cost))

    def spread(self, items, lo, hi, stream, slack=6, cost=None):
        n = len(items)
        for k, t in enumerate(items):
            c = lo + (hi - lo) * k // max(n, 1)
            self.add(t, max(lo, c - slack), hi, stream, cost)

    def cut(self, pos, *glue):
        self.cuts.setdefault(pos, []).extend(glue)

    def build(self, post=lambda x: x):
        pts = sorted(set([0, len(self.ms)]) | set(self.cuts))
        last = {}
        for f in self.fl:
            seg = sum(1 for x in pts if x <= max(f.lo, 0))
            assert seg >= last.get(f.stream, 0), (f.stream, f.ins, f.lo)
            last[f.stream] = seg
        secs = [Sec(f"{self.name}_0")]
        for S, E in zip(pts, pts[1:] + [None]):
            for g in self.cuts.get(S, []):
                if isinstance(g, Sec):
                    secs += [g, Sec(f"{self.name}_{S}")]
                else:
                    secs[-1].e(g)
            if E is None:
                break
            fl = []
            for f in self.fl:
                if S <= f.lo < E or (S == 0 and f.lo < 0):
                    g = F(f.ins, f.lo - S, min(f.hi, E - 1) - S, f.stream, f.cost, f.tail)
                    fl.append(g)
            secs[-1].ext(post(interleave(self.ms[S:E], fl)))
        return secs
```

```python
from fcommon import *

V_L = 2
V_B, V_NINF, V_LS, V_NP = 6, 7, 8, 12
V_XW, V_XR, V_XL, V_QW, V_QR, V_B2 = 14, 15, 16, 17, 18, 19
V_CM = 20
V_WA = 24
V_T = 32
V_PS = 40
V_S, V_P, V_NM, V_O = 64, 96, 112, 128
A_Q, A_K, A_V, A_X = 0, 64, 128, 192
HP = [192, 224, 0, 32]

S_KV, S_WQ, S_WS, S_SY, S_MASK = 8, 12, 16, 20, 24
S_WAVE, S_HEAD, S_I, S_CNT, S_G, S_MA, S_MB, S_X1 = 32, 33, 34, 35, 36, 37, 38, 39
S_HQ, S_CO = 40, 44
S_FB, S_XLAST, S_BAD, S_T0, S_T1 = 48, 49, 50, 52, 53
S_TP = 54
S_BLK = 96
V_KF, V_HF, V_KFA, V_HFA = 44, 48, 56, 57
XBASE = 131072
DMA_COST = 8
THR = 0x5f800000


def O(slot, db):
    return V_O + slot * 32 + db * 4


def Sreg(par, kb):
    return V_S + par * 16 + kb * 4


def Preg(par, hf):
    return V_P + par * 8 + hf * 4


def qk_mfmas(slot, nkb, diag, par):
    out = []
    for kb in range(nkb):
        for dc in range(4):
            c = None
            if dc == 0:
                c = v(V_CM, 4) if kb == diag else v(V_NM + slot * 4, 4)
            out.append(mfma(v(Sreg(par, kb), 4), a(A_K + (kb * 4 + dc) * 4, 4), a(A_Q + slot * 16 + dc * 4, 4), c))
    return out


def pv_mfmas(slot, nhf, par, vb=A_V):
    return [mfma(v(O(slot, db), 4), a(vb + (db * 2 + hf) * 4, 4), v(Preg(par, hf), 4)) for db in range(8) for hf in range(nhf)]


def softmax(slot, nkb, par, lo=-1):
    out = []
    l = v(V_LS + slot)
    for kb in range(nkb):
        r = Sreg(par, kb)
        p = Preg(par, kb >> 1) + 2 * (kb & 1)
        E = lambda j: f"v_exp_f32 {v(r + j)}, {v(r + j)}"
        A = lambda j: f"v_add_f32 {l}, {l}, {v(r + j)}"
        C = lambda j: f"v_cvt_pk_bf16_f32 {v(p + j)}, {v(r + 2 * j)}, {v(r + 2 * j + 1)}"
        for t in (E(0), E(1), A(0), A(1), E(2), E(3), C(0), A(2), A(3), C(1)):
            out.append(F(t, lo, 10**6, 'sm'))
    if nkb & 1:
        p = Preg(par, nkb >> 1) + 2
        out.append(F(f"v_mov_b64 {v(p, 2)}, 0", lo, 10**6, 'sm'))
    return out


def kread(kb, dc, off, base=V_B):
    return f"ds_read_b128 {a(A_K + (kb * 4 + dc) * 4, 4)}, {v(base)} offset:{off + (kb * 4 + dc) * 1024}"


def vread(db, hf, off, dst=A_V):
    return f"ds_read_b128 {a(dst + (db * 2 + hf) * 4, 4)}, {v(V_B)} offset:{off + 16384 + (db * 2 + hf) * 1024}"


def k_main(off, n, nkb=3, base=V_B):
    return [F(kread(kb, dc, off, base), kb * 4 + dc, min(n - 1, n + kb * 4 + dc - 12), 'k') for kb in range(nkb) for dc in range(4)]


def k_late(off):
    return [F(kread(3, dc, off), -1, 1 + dc // 2, 'k') for dc in range(4)]


def v_first(off, nq):
    return [F(vread(db, hf, off), nq + db * 2 + hf, nq + db * 2 + hf + 6, 'v') for db in range(4) for hf in range(2)]


def v_second(off, nq, nhf):
    return [F(vread(db, hf, off), -1, max(0, nq + db * nhf - 10), 'v') for db in range(4, 8) for hf in range(2)]


def dma8(name, m0, voff, los, post=()):
    out = []
    for k in range(8):
        g = []
        if k % 4 == 0:
            c = m0[1] + k * 1024
            g.append(f"s_add_u32 m0, {s(m0[0])}, {c}" if c else f"s_mov_b32 m0, {s(m0[0])}")
            g.append("s_nop 0")
        g.append(grp(f"buffer_load_dwordx4 {v(voff + k // 4)}, {s(S_KV, 4)}, {s(S_G)} offen offset:{(k % 4) * 1024} sc1 lds", name, k == 0))
        if k == 7:
            g += list(post)
        out.append(g)
    res = []
    for k, g in enumerate(out):
        if k % 4 == 0:
            res.append(F(g[0], los[k][0], los[k][1], 'd'))
            res.append(F(g[2:], los[k][0] + 1, los[k][1] + 1, 'd', OPT.get('dc', 8) + 4 * (len(g) - 3), ))
        else:
            res.append(F(g, los[k][0], los[k][1], 'd', OPT.get('dc', 8) + 4 * (len(g) - 1)))
    return res


def fix_m0(ins):
    out = []
    for i in ins:
        if i.kind == 'dma' and out and out[-1].kind == 'salu' and 'm0' in out[-1].wr:
            out.append(I("s_nop 0"))
        out.append(i)
    return out


def stage(sec, qk, pv, sm, extra=()):
    ms = (qk_mfmas(*qk) if qk else []) + (pv_mfmas(*pv) if pv else [])
    fl = (softmax(*sm) if sm else []) + list(extra)
    sec.ext(fix_m0(interleave(ms, fl)))


def diag_init(slot, lo=-1, hi=10**6):
    return [F(f"v_cndmask_b32_e64 {v(V_CM + j)}, {v(V_NINF)}, {v(V_NM + slot * 4)}, {s(S_MASK + 2 * j, 2)}", lo, hi, 'cm') for j in range(4)]


def l_reduce(slot, t):
    l = v(V_LS + slot)
    out = []
    for sw in ("v_permlane16_swap_b32", "v_permlane32_swap_b32"):
        out += [f"v_mov_b32 {v(t + 1)}, {l}", "s_nop 1", f"{sw} {l}, {v(t + 1)}", f"v_add_f32 {l}, {l}, {v(t + 1)}"]
    out += [f"v_rcp_f32 {v(t)}, {l}", f"v_cmp_nge_f32 vcc, {THR:#x}, {l}", f"s_or_b64 {s(S_BAD, 2)}, {s(S_BAD, 2)}, vcc"]
    return out


def finish_slot(slot, r, packed, part=None, zero=False):
    out = []
    for dc in range(4):
        o = O(slot, 2 * dc)
        t = V_T + (dc & 1) * 4
        if part is not None:
            p = O(part, 2 * dc)
            if packed:
                out += [f"v_pk_add_f32 {v(o + 2 * j, 2)}, {v(o + 2 * j, 2)}, {v(p + 2 * j, 2)}" for j in range(4)]
            else:
                out += [f"v_add_f32 {v(o + j)}, {v(o + j)}, {v(p + j)}" for j in range(8)]
        if packed:
            out += [f"v_pk_mul_f32 {v(o + 2 * j, 2)}, {v(o + 2 * j, 2)}, {v(r, 2)} op_sel_hi:[1,0]" for j in range(4)]
        else:
            out += [f"v_mul_f32 {v(o + j)}, {v(o + j)}, {v(r)}" for j in range(8)]
        out += [f"v_cvt_pk_bf16_f32 {v(t + j)}, {v(o + 2 * j)}, {v(o + 2 * j + 1)}" for j in range(4)]
        out.append(grp(f"buffer_store_dwordx4 {v(t, 4)}, {v(V_L)}, {s(S_WS, 4)}, {s(S_CO + slot)} offen offset:{dc * 1024} sc1", 'X', dc == 0))
        if zero:
            out += [f"v_mov_b64 {v(o + 2 * j, 2)}, 0" for j in range(4)]
    return out


def q_read(slot, dst):
    return [f"ds_read_b128 {a(dst + dc * 4, 4)}, {v(V_QR)} offset:{(slot * 4 + dc) * 1024}" for dc in range(4)]


def spread(n, lo, hi):
    return [(lo + (hi - lo) * k // n, lo + (hi - lo) * (k + 1) // n + 2) for k in range(n)]


def tile_dma(m0, lo0, post):
    f = dma8('T', (m0, 0), V_L, [(4, 10), (10, 16), (16, 22), (22, 28), (2, 6), (8, 14), (16, 22), (22, 28)], post)
    return f[:5], f[5:8], f[8:]


def kf_load():
    return [f"buffer_load_dwordx4 {v(V_KF, 4)}, {v(V_KFA)}, {s(S_SY, 4)}, 0 offen sc1"]


def hf_load():
    return [f"buffer_load_dwordx4 {v(V_HF + 4 * k, 4)}, {v(V_HFA)}, {s(S_SY, 4)}, 0 offen offset:{16 * k} sc1" for k in range(2)]


def full_tile(sec, off, last, m0, post, koff):
    d0, d1, d2 = tile_dma(m0, 0, post)
    x = [F(t, -1, 3, 'd', DMA_COST) for t in kf_load()] if last else []
    stage(sec, (0, 4, None, 0), (2, 2, 0), (3, 4, 1), k_late(off) + x + d0)
    stage(sec, (1, 4, None, 1), (3, 2, 1), (0, 4, 0), v_first(off, 16) + d1)
    stage(sec, (2, 4, None, 0), (0, 2, 0), (1, 4, 1), v_second(off, 16, 2) + d2)
    sec.e(need('T', 2), "s_barrier")
    x = [F(f"v_xor_b32 {v(V_B)}, 0x10000, {v(V_B)}", -1, -1, 'k')] if last else []
    return x


def build_p1(name):
    sec = Sec("p1")
    adv = f"s_add_u32 {s(S_G)}, {s(S_G)}, 32768"
    full_tile(sec, 0, False, S_MB, [adv, f"s_xor_b32 {s(S_MB)}, {s(S_MB)}, 0x10000"], 0)
    stage(sec, (3, 4, None, 1), (1, 2, 1), (2, 4, 0), k_main(32768, 32))
    x = full_tile(sec, 32768, True, S_MA, [adv, f"s_xor_b32 {s(S_MA)}, {s(S_MA)}, 0x10000"], 0)
    ctl = [F(f"s_sub_u32 {s(S_CNT)}, {s(S_CNT)}, 1", 20, 30, 'c'), F(f"s_cmp_lg_u32 {s(S_CNT)}, 0", 20, 30, 'c')]
    stage(sec, (3, 4, None, 1), (1, 2, 1), (2, 4, 0), x + k_main(0, 32) + ctl)
    sec.e(f"s_cbranch_scc1 {name}_p1")
    return sec


def build_d1(name, w):
    sec = Sec(f"d1_{w}")
    sec.e(f"{name}_d1_{w}:")
    n0, h0 = w + 1, (w + 2) // 2
    n1, h1 = 4 - w, (5 - w) // 2
    d0, d1, d2 = tile_dma(S_MB, 0, [f"s_add_u32 {s(S_G)}, {s(S_G)}, {s(S_T1)}"])
    stage(sec, (0, 4, None, 0), (2, 2, 0), (3, 4, 1), k_late(0) + d0)
    stage(sec, (1, 4, None, 1), (3, 2, 1), (0, 4, 0), v_first(0, 16) + d1 + diag_init(2, 4, 28))
    fld = [F(t, 2, 20, 'd', DMA_COST) for t in kf_load() + hf_load()]
    stage(sec, (2, n0, w, 0), (0, 2, 0), (1, 4, 1), v_second(0, 4 * n0, 2) + [F(f.ins, -1, 10**6, 'd', f.cost) for f in d2])
    sec.e(need('T', 2), "s_barrier")
    sw2 = [F(t, 4, 10**6, 'q') for t in q_read(0, A_Q + 32)] + [F(f"v_mov_b32 {v(V_NM + 8 + j)}, {v(V_NP)}", 4, 10**6, 'q') for j in range(4)]
    stage(sec, (3, 4, None, 1), (1, 2, 1), (2, n0, 0), k_main(32768, 32) + diag_init(3, 4, 28) + sw2)
    lr = [F(t, 2, 10**6, 'e') for t in l_reduce(2, V_PS)]
    stage(sec, (3, n1, 3 - w, 0), (2, h0, 0), (3, 4, 1), k_late(32768) + lr + fld)
    sw3 = [F(t, 2, 10**6, 'q') for t in q_read(1, A_Q + 48)] + [F(f"v_mov_b32 {v(V_NM + 12 + j)}, {v(V_NP + 1)}", 2, 10**6, 'q') for j in range(4)]
    ep = finish_slot(2, V_PS, False, zero=True)
    half = len(ep) // 2
    stage(sec, (0, 4, None, 1), (3, 2, 1), (3, n1, 0), v_first(32768, 16) + sw3 + [F(t, 5, 10**6, 'e') for t in ep[:half]])
    sec.e(need('T', 0), "s_barrier")
    x = [F(f"v_xor_b32 {v(V_B2)}, {s(S_X1)}, {v(V_B)}", -1, -1, 'k')]
    kd = dma8('K2', (S_MA, 0), V_L, spread(8, 2, 20))
    lr = [F(t, 2, 10**6, 'e2') for t in l_reduce(3, V_PS + 2)]
    stage(sec, (1, 4, None, 0), (3, h1, 0), (0, 4, 1),
          x + k_main(0, 16 + 8 * h1, base=V_B2) + v_second(32768, 16, h1) + kd + [F(t, -1, 10**6, 'e') for t in ep[half:]] + lr + diag_init(0, 2))
    sec.e(f"v_mov_b32 {v(V_B)}, {v(V_B2)}", f"v_mov_b64 {v(V_LS + 2, 2)}, 0",
          f"s_mov_b32 {s(S_CNT)}, {s(S_T0)}", "s_nop 3")
    sec.ext(finish_slot(3, V_PS + 2, True, zero=True))
    cm = tag_cmp([V_KF + 2 * k for k in range(6)])
    sec.ext(cm)
    g, back = check_site(f"{name}_k1_{w}")
    sec.ext(g)
    back.e("s_waitcnt lgkmcnt(0)", "s_barrier")
    back.e(f"s_cmp_lg_u32 {s(S_CNT)}, 0", f"s_cbranch_scc1 {name}_p2", f"s_branch {name}_d2_{w}")
    return sec, back, retry_loop(f"{name}_k1_{w}", kf_load() + hf_load(), cm)


def build_p2(name):
    sec = Sec("p2")
    vd = dma8('V2', (S_MA, 16384), V_L + 2, spread(8, 3, 28),
              [f"s_add_u32 {s(S_G)}, {s(S_G)}, 65536", f"s_xor_b32 {s(S_MA)}, {s(S_MA)}, 0x10000"])
    stage(sec, (2, 4, None, 1), (0, 2, 1), (1, 4, 0), k_late(0) + vd)
    sec.e(need('V2', 1), "s_barrier")
    kd = dma8('K2', (S_MA, 0), V_L, spread(4, 0, 16) + spread(4, 12, 28))
    stage(sec, (3, 4, None, 0), (1, 2, 0), (2, 4, 1), v_first(0, 16) + kd[:5])
    c = [F(f"s_cmp_eq_u32 {s(S_CNT)}, 1", 24, 30, 'c'), F(f"s_cselect_b32 {s(S_X1)}, {s(S_XLAST)}, 0x10000", 24, 30, 'c')]
    stage(sec, (0, 4, None, 1), (2, 2, 1), (3, 4, 0), v_second(0, 16, 2) + kd[5:] + c)
    sec.e(need('K2', 1), "s_barrier")
    x = [F(f"v_xor_b32 {v(V_B)}, {s(S_X1)}, {v(V_B)}", -1, -1, 'k')]
    ctl = [F(f"s_sub_u32 {s(S_CNT)}, {s(S_CNT)}, 1", 20, 30, 'c'), F(f"s_cmp_lg_u32 {s(S_CNT)}, 0", 20, 30, 'c')]
    stage(sec, (1, 4, None, 0), (3, 2, 0), (0, 4, 1), x + k_main(0, 32) + ctl)
    sec.e(f"s_cbranch_scc1 {name}_p2")
    return sec


def build_d2(name, w):
    sec = Sec(f"d2_{w}")
    sec.e(f"{name}_d2_{w}:")
    n0, h0 = w + 1, (w + 2) // 2
    n1, h1 = 4 - w, (5 - w) // 2
    wr = [F(f"ds_write_b128 {v(V_XW)}, {v(O(sl, db), 4)} offset:{(sl - 2) * 8192 + db * 1024}", 2 if sl == 2 else 6, 10**6, 'x', 12)
          for sl in (2, 3) for db in range(8)]
    stage(sec, (0, n0, w, 1), (0, 2, 1), (1, 4, 0), k_late(0) + wr[:8])
    sec.e("s_waitcnt vmcnt(0)", "s_barrier")
    lw = [F(f"ds_write_b32 {v(V_XL)}, {v(V_LS + 2 + k)} offset:{k * 256}", -1, 10**6, 'x') for k in range(2)]
    kd = [F(kread(kb, dc, 32768), kb * 4 + dc, min(31, 32 + kb * 4 + dc - 12), 'k') for kb in range(n1) for dc in range(4)]
    pf = []
    if OPT.get('pfw', 1):
        pf = [F(t, 0, 28, 'd') for t in (f"v_lshrrev_b32 {v(V_KF)}, 17, {v(V_F)}", "s_lshr_b32 s3, s2, 3", "s_lshl_b32 s3, s3, 17", f"s_add_u32 s3, s3, {WS_WOT:#x}")]
        for k in range(4):
            pf += [F([f"buffer_load_dword {a(A_X + k)}, {v(V_KF)}, {s(S_WS, 4)}, s3 offen sc1", "s_add_u32 s3, s3, 0x8000"], 0, 28, 'd', 12)]
    stage(sec, (1, 4, None, 0), (1, 2, 0), (0, n0, 1),
          [F(f.ins, -1, 24, 'x', 12) for f in wr[8:]] + lw + kd + v_first(0, 16) + diag_init(1, 2, 28) + pf)
    sec.e("s_waitcnt lgkmcnt(0)", "s_barrier")
    rd = [F(f"ds_read_b128 {v(O(sl, db), 4)}, {v(V_XR)} offset:{(sl - 2) * 8192 + db * 1024}", 2, 10**6, 'x') for sl in (2, 3) for db in range(8)]
    lrd = [F(f"v_xor_b32 {v(V_XL)}, 512, {v(V_XL)}", 0, 10**6, 'x')]
    lrd += [F(f"ds_read_b32 {v(V_LS + 2 + k)}, {v(V_XL)} offset:{k * 256}", 0, 10**6, 'x') for k in range(2)]
    stage(sec, (1, n1, 3 - w, 1), (0, h0, 1), (1, 4, 0), v_second(0, 4 * n1, h0) + lrd + rd[:8])
    vd = [F(vread(db, hf, 32768, A_K), -1, 6, 'v') for db in range(8) for hf in range(h1)]
    e0 = [f"v_add_f32 {v(V_LS)}, {v(V_LS)}, {v(V_LS + 2)}"] + l_reduce(0, V_PS) + finish_slot(0, V_PS, False, part=2)
    cut = len(e0) // 3
    stage(sec, None, (1, 2, 0), (1, n1, 1, 2), vd + rd[8:] + [F(t, 0, 10**6, 'e') for t in e0[:cut]])
    e1 = [f"v_add_f32 {v(V_LS + 1)}, {v(V_LS + 1)}, {v(V_LS + 3)}"] + l_reduce(1, V_PS + 2)
    sec.e("s_nop 0")
    stage(sec, None, (1, h1, 1, A_K), None, [F(t, -1, 10**6, 'e') for t in e0[cut:] + e1])
    sec.e("s_nop 3")
    sec.ext(finish_slot(1, V_PS + 2, True, part=3))
    sec.e(f"s_branch {name}_fin")
    return sec


def q_finish(slot):
    out = []
    for dc in range(4):
        o, t = O(slot, 2 * dc), V_T + (dc & 1) * 4
        g = [f"v_cvt_pk_bf16_f32 {v(t + j)}, {v(o + 2 * j)}, {v(o + 2 * j + 1)}" for j in range(4)]
        if slot < 2:
            g.append(f"ds_write_b128 {v(V_QW)}, {v(t, 4)} offset:{(slot * 4 + dc) * 1024}")
        g += [f"v_accvgpr_write_b32 {a(A_Q + slot * 16 + dc * 4 + j)}, {v(t + j)}" for j in range(4)]
        g += [f"v_mov_b64 {v(o + 2 * j, 2)}, 0" for j in range(4)]
        out.append(g)
    return out


def row_max(b, m):
    t = V_T + 6 + (b & 1)
    out = []
    for sw in ("v_permlane16_swap_b32", "v_permlane32_swap_b32"):
        out += [f"v_mov_b32 {v(t)}, {v(m)}", "s_nop 1", f"{sw} {v(m)}, {v(t)}", f"v_max_f32 {v(m)}, {v(m)}, {v(t)}"]
    dst = [V_NM + b * 4 + j for j in range(4)] if b < 4 else [V_NP + b - 4]
    out += [f"v_sub_f32 {v(d)}, 0, {v(m)}" for d in dst]
    return out


def qsrc(b):
    return A_Q + b * 16 if b < 4 else A_X + (b - 4) * 16


def build_slow(name):
    SR = lambda b: V_PS + 4 * b if b < 4 else Preg(1, b - 4)
    sec = Sec("slow")
    sec.e(f"{name}_slow:", f"s_branch {name}_ks_retry", f"{name}_ks_back:")
    for b in range(6):
        sec.e(f"v_mov_b32 {v(V_T + b)}, {v(V_NINF)}")
    sec.e(f"s_mov_b32 {s(S_T0)}, 0")
    lp = Sec("slowloop")
    lp.e(f"{name}_slowloop:")
    lp.e(f"s_lshr_b32 {s(S_T1)}, {s(S_T0)}, 2", f"s_lshl_b32 {s(S_T1)}, {s(S_T1)}, 15", f"s_and_b32 s3, {s(S_T0)}, 3", "s_lshl_b32 s3, s3, 12",
         f"s_add_u32 {s(S_T1)}, {s(S_T1)}, s3")
    for dc in range(4):
        lp.e(f"buffer_load_dwordx4 {v(V_S + dc * 4, 4)}, {v(V_L)}, {s(S_KV, 4)}, {s(S_T1)} offen offset:{dc * 1024} sc1")
    lp.e("s_waitcnt vmcnt(0)")
    for b in range(6):
        lp.e(f"s_cmp_lt_u32 {s(S_T0)}, {s(S_BLK + b)}", "s_cselect_b64 s[4:5], -1, 0", f"s_cmp_eq_u32 {s(S_T0)}, {s(S_BLK + b)}")
        for j in range(4):
            lp.e(f"s_cselect_b64 s[6:7], {s(S_MASK + 2 * j, 2)}, s[4:5]", f"v_cndmask_b32_e64 {v(V_CM + j)}, {v(V_NINF)}, 0, s[6:7]")
        lp.e("s_nop 1")
        for dc in range(4):
            lp.e(mfma(v(SR(b), 4), v(V_S + dc * 4, 4), a(qsrc(b) + dc * 4, 4), None if dc else v(V_CM, 4)))
    lp.e("s_nop 7")
    for b in range(6):
        r = SR(b)
        lp.e(f"v_max3_f32 {v(V_T + b)}, {v(V_T + b)}, {v(r)}, {v(r + 1)}", f"v_max3_f32 {v(V_T + b)}, {v(V_T + b)}, {v(r + 2)}, {v(r + 3)}")
    lp.e(f"s_add_u32 {s(S_T0)}, {s(S_T0)}, 1", f"s_cmp_lt_u32 {s(S_T0)}, 128", f"s_cbranch_scc1 {name}_slowloop")
    end = Sec("slowend")
    for b in range(6):
        end.ext(row_max(b, V_T + b))
    end.e(f"s_branch {name}_go2")
    return sec, lp, end, retry_loop(f"{name}_ks", kf_load(), tag_cmp([V_KF, V_KF + 2]))
```

```python
from fcommon import *
from f_attn import *

S_C, S_W, S_ST, S_X, S_WM, S_CV, S_WO = 56, 60, 64, 68, 72, 76, 84
S_SK, S_SV = 68, 72
S_OMOD, S_OH, S_OWOT, S_OHF, S_OKF, S_OCF = 74, 75, 76, 77, 78, 79
S_SOC, S_SOW, S_M0, S_GQ = 88, 89, 90, 91
V_OC, V_OW, V_C0 = 6, 10, 14
A_C, A_ACC7, A_W = 0, 128, 160
A_XR, A_XN, A_GR, A_WT = 64, 72, 88, 108
X_WOT, X_MOD = XBASE, XBASE + 16384
BG = 100
TQ = 1024
WSLOT = [0, 16384, 65536, 81920, 32768, 49152, 98304, 114688]
INF = 10 ** 6


def acc(db, jb):
    return a(A_ACC7 + jb * 4, 4) if db == 7 else v(32 + (db * 8 + jb) * 4, 4)


def kv_mfma(c, db, jb, kk):
    W, C = a(A_W + (db % 4) * 8 + kk * 4, 4), a(A_C + (jb * 2 + kk) * 4, 4)
    c0 = "0" if (c == 0 and kk == 0) else None
    return mfma(acc(db, jb), W, C, c0) if db < 4 else mfma(acc(db, jb), C, W, c0)


def kvw_reads(c, db):
    return [f"ds_read_b64_tr_b16 {a(A_W + (db % 4) * 8 + kk * 4 + 2 * h, 2)}, {v(V_WA + (db & 3))} "
            f"offset:{(c & 1) * 32768 + (db >> 2) * 16384 + kk * 8192 + h * 1024}" for kk in range(2) for h in range(2)]


def c_read(c, jb, kk):
    return f"ds_read_b128 {a(A_C + (jb * 2 + kk) * 4, 4)}, {v(V_C0 + kk)} offset:{(c & 1) * 32768 + jb * 2048}"


def add_c(d, src, c):
    return f"s_add_u32 {d}, {s(src)}, {c:#x}" if c else f"s_mov_b32 {d}, {s(src)}"


def dma4(name, first, m0, soff, srd_, vo):
    ld = lambda k: grp(f"buffer_load_dwordx4 {v(vo + k)}, {s(srd_, 4)}, s3 offen offset:{k * 1024} lds", name, first and k == 0)
    return [[add_c("m0", *m0), add_c("s3", *soff), ld(0)], [ld(1)], [ld(2)], [ld(3)]]


def chunk_dma(c):
    g = []
    for hi in range(2):
        g += dma4('C', hi == 0, (S_M0, (c & 1) * 32768 + hi * 4096), (S_SOC, c * 128 + hi * 32768), S_C, V_OC)
    for hi in range(2):
        g += dma4('C', False, (S_M0, 65536 + (c & 1) * 32768 + hi * 4096), (S_SOW, (c * 64 + hi * 16) * 8192), S_W, V_OW)
    return g


def wq_dma(p):
    return dma4('W', True, (S_MB, WSLOT[p]), (S_GQ, p * 64 * 8192), S_WQ, V_OW)


def h_load(p, slot):
    return [f"buffer_load_dwordx4 {a(HP[p & 3] + slot * 8 + kk * 4, 4)}, {v(V_L + ((p >> 1) & 1))}, {s(S_WS, 4)}, {s(S_HQ + slot)} offen "
            f"offset:{(p & 1) * 2048 + kk * 1024} sc1" for kk in range(2)]


def wq_read(p, db):
    wb = A_V if p & 1 else A_K
    return [f"ds_read_b64_tr_b16 {a(wb + db * 8 + kk * 4 + 2 * h, 2)}, {v(V_WA + db)} offset:{(WSLOT[p] & 0xffff) + kk * 8192 + h * 1024}"
            for kk in range(2) for h in range(2)]


def ow_offsets(g, c, t):
    out = []
    for k in range(4):
        out += [f"v_or_b32 {v(t)}, {((k >> 1) & 1) << 2}, {v(g)}", f"v_lshrrev_b32 {v(t + 1)}, 1, {v(c)}", f"v_xor_b32 {v(t)}, {v(t + 1)}, {v(t)}",
                f"v_lshlrev_b32 {v(t)}, 1, {v(t)}", f"v_and_b32 {v(t + 1)}, 1, {v(c)}", f"v_or_b32 {v(t)}, {v(t)}, {v(t + 1)}",
                f"v_lshlrev_b32 {v(t)}, 4, {v(t)}", f"v_lshl_add_u32 {v(t)}, {v(g)}, 13, {v(t)}",
                f"v_add_u32 {v(V_OW + k)}, {4 * 8192 * k - 1024 * k}, {v(t)}"]
    return out


def wa_base(g, c, t, dst):
    return [f"v_lshrrev_b32 {v(t)}, 2, {v(c)}", f"v_and_b32 {v(t + 1)}, 1, {v(g)}", f"v_lshl_or_b32 {v(t + 1)}, {v(t + 1)}, 2, {v(t)}",
            f"v_lshl_add_u32 {v(t)}, {v(g)}, 3, {v(t)}", f"v_lshlrev_b32 {v(t)}, 8, {v(t)}", f"v_lshl_add_u32 {v(t)}, {v(t + 1)}, 5, {v(t)}",
            f"v_and_b32 {v(t + 1)}, 3, {v(c)}", f"v_lshl_add_u32 {v(dst)}, {v(t + 1)}, 3, {v(t)}"]


def hq_init():
    out = []
    for k in range(4):
        out += [f"s_lshl_b32 {s(S_HQ + k)}, {s(S_BLK + k)}, 14", f"s_add_u32 {s(S_HQ + k)}, {s(S_HQ + k)}, {WS_H:#x}"]
    return out


def unpack(dst, src, n):
    out = []
    for k in range(n):
        out += [f"v_lshlrev_b32 {v(dst + 2 * k)}, 16, {v(src + k)}", f"v_and_b32 {v(dst + 2 * k + 1)}, 0xffff0000, {v(src + k)}"]
    return out


DPP4 = ("quad_perm:[1,0,3,2]", "quad_perm:[2,3,0,1]", "row_half_mirror", "row_mirror")


def dpp_add(r, ctl):
    return f"v_add_f32_dpp {v(r)}, {v(r)}, {v(r)} {ctl} row_mask:0xf bank_mask:0xf"


def wave_sum(r, t):
    out = [dpp_add(r, c) for c in DPP4]
    for sw in ("v_permlane16_swap_b32", "v_permlane32_swap_b32"):
        out += [f"v_mov_b32 {v(t)}, {v(r)}", f"{sw} {v(r)}, {v(t)}", f"v_add_f32 {v(r)}, {v(r)}, {v(t)}"]
    return out


def prologue(name):
    p = Sec("pro")
    p.e("s_cmp_lt_u32 s2, 256", f"s_cbranch_scc1 {name}_go", "s_endpgm", f"{name}_go:")
    p.e("s_load_dwordx16 s[36:51], s[0:1], 0", f"s_load_dwordx4 s[52:55], s[0:1], {ARG['c']}", f"s_load_dwordx2 s[6:7], s[0:1], {ARG['ws']}")
    PX, PC, PQ, PK, PV, PO, PCV, PM = 36, 38, 40, 42, 44, 46, 52, 54
    p.e("v_lshrrev_b32 v20, 6, v0", "v_and_b32 v21, 63, v0", f"v_readfirstlane_b32 {s(S_WAVE)}, v20")
    p.e("s_and_b32 s4, s2, 7", "s_lshr_b32 s5, s2, 3", f"s_lshl_b32 {s(S_HEAD)}, s4, 2", f"s_lshr_b32 {s(S_I)}, s5, 2", "s_and_b32 s3, s5, 3",
        f"s_add_u32 {s(S_HEAD)}, {s(S_HEAD)}, s3")
    p.e("v_lshrrev_b32 v16, 3, v21", "v_and_b32 v17, 7, v21", "v_lshrrev_b32 v18, 4, v21", "v_and_b32 v19, 15, v21", f"v_lshlrev_b32 {v(V_L)}, 4, v21")
    for k in range(4):
        p.e(f"v_add_u32 v22, {4 * k}, v18", "v_and_b32 v22, 7, v22", "v_xor_b32 v22, v17, v22", "v_lshlrev_b32 v22, 4, v22",
            "v_lshl_add_u32 v22, v16, 10, v22", f"v_add_u32 {v(V_OC + k)}, {8192 * k - 1024 * k}, v22")
    p.ext(ow_offsets(18, 19, 22))
    p.e(f"s_and_b32 s84, {s(S_WAVE)}, 1", f"s_lshr_b32 s85, {s(S_WAVE)}, 1", "s_lshl_b32 s86, s84, 4", "s_lshl_b32 s87, s85, 3", "s_add_u32 s86, s86, s87",
        f"s_add_u32 s86, s86, {s(S_I)}", f"s_lshl_b32 {s(S_SOC)}, s86, 16", f"s_lshl_b32 {s(S_SOW)}, s84, 18", f"s_lshl_b32 s87, {s(S_HEAD)}, 8",
        f"s_add_u32 {s(S_SOW)}, {s(S_SOW)}, s87", f"s_lshl_b32 {s(S_M0)}, {s(S_WAVE)}, 13", f"s_lshl_b32 {s(S_GQ)}, {s(S_WAVE)}, 17",
        f"s_add_u32 {s(S_GQ)}, {s(S_GQ)}, s87")
    p.e("s_waitcnt lgkmcnt(0)")
    p.ext(stamp(0))
    srd(p, S_C, PC, size=2 * MB)
    p.e(f"s_cmp_lt_u32 {s(S_WAVE)}, 2", f"s_cselect_b32 {s(S_W)}, {s(PK)}, {s(PV)}", f"s_cselect_b32 {s(S_W + 1)}, {s(PK + 1)}, {s(PV + 1)}",
        f"s_mov_b32 {s(S_W + 2)}, {4 * MB:#x}", f"s_mov_b32 {s(S_W + 3)}, 0x20000")
    for g in chunk_dma(0):
        p.ext(g)
    srd(p, S_SY, 6, off=WS_SYNC, size=SY_SIZE)
    p.e(f"s_load_dword {s(S_TAG)}, {s(S_SY, 2)}, {SY_EPOCH}")
    srd(p, S_CV, PCV, size=1024)
    srd(p, S_WM, PM, size=512 * 6144)
    p.e("s_mul_i32 s86, s4, 24", "s_add_u32 s86, s86, s5", "s_cmp_lt_u32 s5, 24", f"s_cselect_b32 {s(S_WM + 2)}, {s(S_WM + 2)}, 0",
        "s_cselect_b32 s86, s86, 0x8000")
    p.e("v_and_b32 v22, 31, v21", f"s_lshl_b32 s3, {s(S_WAVE)}, 5", "v_add_u32 v22, s3, v22", "v_lshlrev_b32 v23, 1, v22",
        "v_mul_u32_u24 v22, 6144, v22", "v_lshrrev_b32 v28, 5, v21", "v_lshl_add_u32 v22, v28, 4, v22", "s_lshl_b32 s3, s86, 5")
    for k in range(4):
        p.e(f"buffer_load_ushort {v(236 + k)}, v23, {s(S_CV, 4)}, 0 offen offset:{256 * k}")
    for k in range(4):
        p.e(f"buffer_load_dwordx4 {v(240 + 4 * k, 4)}, v22, {s(S_WM, 4)}, s3 offen", f"s_add_u32 s3, s3, {128 * 6144}")
    for g in chunk_dma(1):
        p.ext(g)
    srd(p, S_X, PX, size=2 * MB)
    p.e("s_lshl_b32 s87, s2, 3", f"s_lshl_b32 s3, {s(S_WAVE)}, 1", "s_add_u32 s87, s87, s3", "s_lshl_b32 s3, s87, 10")
    for r in range(2):
        p.e(f"buffer_load_dwordx4 {a(A_XR + 4 * r, 4)}, {v(V_L)}, {s(S_X, 4)}, s3 offen offset:{1024 * r}")
    if OPT.get('pf', 1):
        p.e("s_and_b32 s3, s5, 3", "s_lshl_b32 s3, s3, 3", f"s_add_u32 s3, s3, {s(S_I)}", "s_lshl_b32 s3, s3, 16", "v_lshlrev_b32 v22, 8, v0")
        for k in range(2):
            p.e(f"buffer_load_dword {a(192 + k)}, v22, {s(S_C, 4)}, s3 offen offset:{128 * k}")
    p.e("v_and_b32 v22, 127, v0", "v_lshrrev_b32 v23, 1, v22", "v_and_b32 v22, 1, v22", "v_lshlrev_b32 v22, 7, v22", "v_lshl_add_u32 v4, v23, 13, v22",
        f"s_lshl_b32 s3, {s(S_I)}, 19", f"s_lshl_b32 {s(S_RE)}, {s(S_HEAD)}, 8", f"s_add_u32 {s(S_RE)}, {s(S_RE)}, s3")
    if OPT.get('pf', 1):
        p.e(f"buffer_load_dword {a(194)}, v4, {s(S_W, 4)}, {s(S_RE)} offen")
    if OPT.get('pfc', 1):
        p.e("s_getpc_b64 s[92:93]", f"{name}_pc:", "s_lshl_b32 s3, s5, 12", "v_lshl_add_u32 v22, v0, 4, s3",
            f"v_min_u32 v22, {name}_codeend-{name}_pc-4, v22", "v_mov_b32 v23, 0", "v_lshl_add_u64 v[22:23], v[22:23], 0, s[92:93]",
            f"global_load_dword {a(195)}, v[22:23], off")
    srd(p, S_WQ, PQ, size=4 * MB)
    srd(p, S_WS, 6, size=WS_SIZE)
    p.e(f"s_lshl_b32 {s(S_OMOD)}, s86, 6", f"s_add_u32 {s(S_OMOD)}, {s(S_OMOD)}, {SY_MODT:#x}")
    p.e(f"s_lshr_b32 s3, s87, 4", "s_lshl_b32 s3, s3, 14", f"s_and_b32 {s(S_OH)}, s87, 15", f"s_lshl_b32 {s(S_OH)}, {s(S_OH)}, 4",
        f"s_add_u32 {s(S_OH)}, {s(S_OH)}, s3", f"s_add_u32 {s(S_OH)}, {s(S_OH)}, {WS_H:#x}")
    p.e("s_and_b32 s3, s2, 1", "s_lshl_b32 s3, s3, 2", f"s_add_u32 s3, s3, {s(S_WAVE)}", "s_lshl_b32 s3, s3, 19", f"s_lshr_b32 {s(S_OWOT)}, s2, 1",
        f"s_lshl_b32 {s(S_OWOT)}, {s(S_OWOT)}, 12", f"s_add_u32 {s(S_OWOT)}, {s(S_OWOT)}, s3", f"s_add_u32 {s(S_OWOT)}, {s(S_OWOT)}, {WS_WOT:#x}")
    p.e(f"s_lshl_b32 {s(S_OHF)}, s2, 3", f"s_add_u32 {s(S_OHF)}, {s(S_OHF)}, {SY_HF:#x}",
        f"s_lshl_b32 {s(S_OKF)}, {s(S_HEAD)}, 7", f"s_lshl_b32 s3, {s(S_I)}, 3", f"s_add_u32 {s(S_OKF)}, {s(S_OKF)}, s3",
        f"s_add_u32 {s(S_OKF)}, {s(S_OKF)}, {SY_KF:#x}",
        f"s_lshl_b32 {s(S_OCF)}, {s(S_I)}, 8", f"s_lshl_b32 s3, {s(S_HEAD)}, 3", f"s_add_u32 {s(S_OCF)}, {s(S_OCF)}, s3",
        f"s_add_u32 {s(S_OCF)}, {s(S_OCF)}, {SY_CF:#x}")
    p.e("s_lshl_b32 s3, s84, 3", f"s_add_u32 s3, s3, {s(S_I)}", "s_lshl_b32 s3, s3, 15", "s_lshl_b32 s86, s85, 11", f"s_add_u32 {s(S_SK)}, s3, s86",
        f"s_add_u32 {s(S_SK + 1)}, {s(S_SK)}, 8192", f"s_add_u32 {s(S_SK + 2)}, {s(S_SK)}, {16 * 32768}", f"s_add_u32 {s(S_SK + 3)}, {s(S_SK + 1)}, {16 * 32768}",
        "s_lshl_b32 s86, s85, 13", f"s_add_u32 {s(S_SV)}, s3, s86", f"s_add_u32 {s(S_SV + 1)}, {s(S_SV)}, {16 * 32768}")
    p.e("v_lshrrev_b32 v22, 1, v19", "v_xor_b32 v22, v18, v22", "v_lshlrev_b32 v22, 4, v22", "v_lshl_add_u32 v22, v19, 7, v22", "s_lshl_b32 s3, s84, 14",
        f"v_add_u32 {v(V_C0)}, s3, v22", f"v_xor_b32 {v(V_C0 + 1)}, 64, {v(V_C0)}")
    p.ext(wa_base(18, 19, 22, 28))
    p.e("s_lshl_b32 s3, s85, 7", f"s_or_b32 {s(S_X1)}, s3, 0x10000", f"v_xor_b32 {v(V_WA)}, {s(S_X1)}, v28")
    for d in range(1, 4):
        p.e(f"v_xor_b32 {v(V_WA + d)}, {d << 5}, {v(V_WA)}")
    srd(p, S_WO, PO, size=4 * MB)
    p.e(f"s_lshl_b32 s3, {s(S_HEAD)}, 20")
    srd(p, S_KV, 6, off=WS_KV, size=0, off_sgpr=3)
    p.e(f"s_mov_b64 {s(S_ST, 2)}, {s(S_KV, 2)}", f"s_mov_b32 {s(S_ST + 2)}, {MB:#x}", f"s_mov_b32 {s(S_ST + 3)}, 0x20000",
        f"s_sub_u32 s3, 16, {s(S_I)}", f"s_lshl_b32 {s(S_KV + 2)}, s3, 16")
    p.e(f"s_sub_u32 {s(S_T0)}, 15, {s(S_I)}", f"s_lshl_b32 {s(S_T0)}, {s(S_T0)}, 3", f"s_lshl_b32 {s(S_T1)}, {s(S_I)}, 3",
        f"s_add_u32 {s(S_BLK)}, {s(S_T0)}, {s(S_WAVE)}", f"s_xor_b32 {s(S_BLK + 1)}, {s(S_BLK)}, 7",
        f"s_add_u32 {s(S_BLK + 2)}, {s(S_T1)}, {s(S_WAVE)}", f"s_xor_b32 {s(S_BLK + 3)}, {s(S_BLK + 2)}, 7",
        f"s_xor_b32 {s(S_BLK + 4)}, {s(S_BLK)}, 1", f"s_xor_b32 {s(S_BLK + 5)}, {s(S_BLK + 1)}, 1")
    for k in range(4):
        p.e(f"s_lshr_b32 {s(S_T0)}, {s(S_BLK + k)}, 2", f"s_lshl_b32 {s(S_T0)}, {s(S_T0)}, 19", f"s_and_b32 {s(S_T1)}, {s(S_BLK + k)}, 3",
            f"s_lshl_b32 {s(S_T1)}, {s(S_T1)}, 12", f"s_add_u32 {s(S_T0)}, {s(S_T0)}, {s(S_T1)}", f"s_lshl_b32 {s(S_T1)}, {s(S_HEAD)}, 14",
            f"s_add_u32 {s(S_T0)}, {s(S_T0)}, {s(S_T1)}", f"s_add_u32 {s(S_CO + k)}, {s(S_T0)}, {WS_CTX:#x}")
    p.ext(hq_init())
    p.e("v_lshlrev_b32 v22, 2, v18")
    for j in range(4):
        p.e(f"v_add_u32 v23, {j}, v22", f"v_cmp_le_u32_e64 {s(S_MASK + 2 * j, 2)}, v23, v19")
    p.e(f"s_and_b32 {s(S_TP)}, {s(S_I)}, 1", f"s_lshl_b32 {s(S_TP)}, {s(S_TP)}, 16", f"s_and_b32 s3, {s(S_WAVE)}, 1", "s_lshl_b32 s3, s3, 15",
        f"s_or_b32 {s(S_XLAST)}, s3, 0x10000", f"s_mov_b32 {s(S_FB)}, {OPT.get('force_fb', 0)}", f"s_lshl_b32 {s(S_MB)}, {s(S_WAVE)}, 12",
        f"s_mov_b32 {s(S_SPIN)}, {SPIN}", f"v_lshlrev_b32 {v(V_F)}, 24, v0")
    p.e("s_waitcnt lgkmcnt(0)", f"s_mul_i32 {s(S_TAG)}, {s(S_TAG)}, {LCG_A:#x}", f"s_add_u32 {s(S_TAG)}, {s(S_TAG)}, {LCG_C:#x}",
        f"s_mul_i32 {s(S_TAG + 1)}, {s(S_TAG)}, {LCG_A:#x}", f"s_add_u32 {s(S_TAG + 1)}, {s(S_TAG + 1)}, {LCG_C:#x}")
    p.e(need('C', 1), "s_barrier")
    p.ext(stamp(1))
    p.ext(kvw_reads(0, 0))
    for jb in range(8):
        for kk in range(2):
            p.e(c_read(0, jb, kk))
        if jb == 2:
            p.ext(kvw_reads(0, 1))
    return p


def mod_part1():
    C, W, A, T = 236, 240, 224, 232
    out = []
    for op in ("v_lshlrev_b32 {c}, 16, {c}", f"v_mul_f32 {{t}}, {f2u(-LOG2E):#x}, {{c}}", "v_exp_f32 {t}, {t}", "v_add_f32 {t}, 1.0, {t}", "v_rcp_f32 {t}, {t}",
               "v_mul_f32 {c}, {t}, {c}", "v_cvt_pk_bf16_f32 {c}, {c}, {c}", "v_lshlrev_b32 {c}, 16, {c}"):
        out += [op.format(c=v(C + k), t=v(T + k)) for k in range(4)]
    for k in range(4):
        for q in range(4):
            t = T + 2 * (q & 1)
            out += unpack(t, W + 4 * k + q, 1)
            op = "v_fmac_f32" if k else "v_mul_f32"
            out += [f"{op} {v(A + 2 * q + e)}, {v(C + k)}, {v(t + e)}" for e in range(2)]
    out += [f"v_permlane16_swap_b32 {v(A + q)}, {v(A + 4 + q)}" for q in range(4)]
    out += [f"v_add_f32 {v(A + q)}, {v(A + q)}, {v(A + 4 + q)}" for q in range(4)]
    out += [dpp_add(A + q, c) for c in DPP4 for q in range(4)]
    out += [[f"s_lshl_b32 s4, {s(S_WAVE)}, 10", f"s_add_u32 s4, s4, {X_MOD:#x}"], f"v_add_u32 {v(T)}, s4, {v(V_L)}", f"ds_write_b128 {v(T)}, {v(A, 4)}"]
    return out


def mod_part2():
    out = [f"v_and_b32 v20, 0x30, {v(V_L)}", "v_lshlrev_b32 v20, 6, v20", f"v_and_b32 v21, 0x300, {v(V_L)}", "v_or_b32 v20, v20, v21",
           f"v_add_u32 v20, {X_MOD:#x}, v20", "ds_read_b128 v[16:19], v20",
           f"v_lshrrev_b32 v28, 24, {v(V_F)}", "v_and_b32 v28, 0x30, v28", f"v_and_b32 v29, 0xcf000000, {v(V_F)}", "v_or_b32 v28, v28, v29",
           f"v_mov_b32 v22, {s(S_TAG)}", f"v_mov_b32 v23, {s(S_TAG + 1)}"]
    out += [dpp_add(16 + q, c) for c in DPP4[:2] for q in range(4)]
    out += ["v_cvt_pk_bf16_f32 v20, v16, v17", "v_cvt_pk_bf16_f32 v21, v18, v19",
            f"buffer_store_dwordx4 v[20:23], v28, {s(S_SY, 4)}, {s(S_OMOD)} offen sc1"]
    out += unpack(16, 20, 2)
    out += [f"s_add_u32 {s(S_OMOD)}, {s(S_OMOD)}, {SY_MOD - SY_MODT:#x}", f"buffer_store_dwordx4 v[16:19], v28, {s(S_SY, 4)}, {s(S_OMOD)} offen sc1"]
    return out


def ln_row(r):
    out = [f"v_accvgpr_read_b32 {v(28 + k)}, {a(A_XR + 4 * r + k)}" for k in range(4)]
    out += unpack(16, 28, 4)
    out += ["v_add_f32 v3, v16, v17"] + [f"v_add_f32 v3, v3, {v(16 + e)}" for e in range(2, 8)]
    out += wave_sum(3, 28)
    out += [f"v_mul_f32 v3, {f2u(1 / 512):#x}, v3"] + [f"v_sub_f32 {v(16 + e)}, {v(16 + e)}, v3" for e in range(8)]
    out += ["v_mul_f32 v3, v16, v16"] + [f"v_fmac_f32 v3, {v(16 + e)}, {v(16 + e)}" for e in range(1, 8)]
    out += wave_sum(3, 28)
    out += [f"v_mov_b32 v28, {f2u(1e-5):#x}", f"v_fmac_f32 v28, {f2u(1 / 512):#x}, v3", "v_rsq_f32 v28, v28"]
    out += [f"v_mul_f32 {v(16 + e)}, v28, {v(16 + e)}" for e in range(8)]
    out += [f"v_accvgpr_write_b32 {a(A_XN + 8 * r + e)}, {v(16 + e)}" for e in range(8)]
    return out


def wot_dma():
    out = [f"v_and_b32 v5, 0x200, {v(V_L)}", "v_mul_u32_u24 v5, 7, v5", f"v_add_u32 v5, v5, {v(V_L)}",
           ["s_lshr_b32 s6, s2, 1", "s_lshl_b32 s6, s6, 15", "s_and_b32 s7, s2, 1", "s_lshl_b32 s7, s7, 9"],
           ["s_add_u32 s6, s6, s7", f"s_add_u32 s6, s6, {s(S_M0)}"]]
    ld = lambda k: f"buffer_load_dwordx4 v5, {s(S_WO, 4)}, s6 offen offset:{k * 1024} lds"
    return out, [[f"s_add_u32 m0, {s(S_MB)}, {X_WOT:#x}", "s_nop 0", ld(0)], ld(1), ld(2), ld(3)]


def wot_store():
    out = [f"v_and_b32 v5, 0x200, {v(V_L)}", "v_lshlrev_b32 v5, 3, v5", f"v_and_b32 v4, 0x100, {v(V_L)}", "v_lshl_or_b32 v5, v4, 1, v5",
           f"v_and_b32 v4, 0xc0, {v(V_L)}", "v_lshl_or_b32 v5, v4, 4, v5", f"v_and_b32 v4, 0x30, {v(V_L)}", "v_or_b32 v5, v5, v4",
           [f"s_lshl_b32 s6, {s(S_WAVE)}, 7", f"s_add_u32 s6, s6, {X_WOT:#x}"], "v_add_u32 v5, s6, v5"]
    for n in range(4):
        out += [f"ds_read_b64_tr_b16 {a(A_WT + 4 * n + 2 * t, 2)}, v5 offset:{t * 8192 + (n >> 1) * 64 + (n & 1) * 8}" for t in range(2)]
    return out, [f"buffer_store_dwordx4 {a(A_WT + 4 * n, 4)}, {v(V_L)}, {s(S_WS, 4)}, {s(S_OWOT)} offen offset:{n * 1024} sc1" for n in range(4)]


def gran_loads():
    return [f"buffer_load_dwordx4 {a(A_GR + 4 * n, 4)}, v5, {s(S_SY, 4)}, 0 offen offset:{(n >> 1) * 2048 + (n & 1) * 16} sc1" for n in range(4)]


def gran_cmp():
    out = [f"v_accvgpr_read_b32 {v(16 + 2 * n + e)}, {a(A_GR + 4 * n + 2 + e)}" for n in range(4) for e in range(2)]
    return out + tag_cmp([16, 18, 20, 22])


def h_compute():
    out = []
    q = f"{f2u(QSCALE):#x}"
    for hf in range(2):
        out += [f"v_accvgpr_read_b32 {v(28 + e)}, {a(A_GR + 8 + 4 * hf + e)}" for e in range(2)]
        out += [f"v_accvgpr_read_b32 {v(30 + e)}, {a(A_GR + 4 * hf + e)}" for e in range(2)]
        out += unpack(16, 28, 2) + unpack(20, 30, 2)
        out += [f"v_add_f32 {v(16 + e)}, 1.0, {v(16 + e)}" for e in range(4)]
        out += ["v_cvt_pk_bf16_f32 v28, v16, v17", "v_cvt_pk_bf16_f32 v29, v18, v19"]
        out += [f"v_mul_f32 {v(20 + e)}, {q}, {v(20 + e)}" for e in range(4)]
        out += unpack(16, 28, 2)
        out += [f"v_mul_f32 {v(16 + e)}, {q}, {v(16 + e)}" for e in range(4)]
        for r in range(2):
            out += [f"v_accvgpr_read_b32 {v(28 + e)}, {a(A_XN + 8 * r + 4 * hf + e)}" for e in range(4)]
            out += [f"v_fma_f32 {v(28 + e)}, {v(28 + e)}, {v(16 + e)}, {v(20 + e)}" for e in range(4)]
            out += ["v_cvt_pk_bf16_f32 v28, v28, v29", "v_cvt_pk_bf16_f32 v29, v30, v31"]
            out += [f"v_accvgpr_write_b32 {a(A_XR + 4 * r + 2 * hf + e)}, {v(28 + e)}" for e in range(2)]
    out += [f"v_lshrrev_b32 v5, 6, {v(V_L)}", "v_lshlrev_b32 v5, 10, v5", f"v_and_b32 v4, 0x30, {v(V_L)}", "v_lshl_or_b32 v5, v4, 4, v5"]
    out += [f"buffer_store_dwordx4 {a(A_XR + 4 * r, 4)}, v5, {s(S_WS, 4)}, {s(S_OH)} offen offset:{16 * r} sc1" for r in range(2)]
    return out


def pack(dst, srcs):
    r = regs_of(srcs[0]) + regs_of(srcs[1])
    out = []
    if r[0][0] == 'a':
        out += [f"v_accvgpr_read_b32 {v(16 + q)}, {r[q]}" for q in range(8)]
        r = [v(16 + q) for q in range(8)]
    return out + [f"v_cvt_pk_bf16_f32 {v(dst + q)}, {r[2 * q]}, {r[2 * q + 1]}" for q in range(4)]


def k_store(tt, kb, pr, src, first=False):
    return grp(f"buffer_store_dwordx4 {v(src, 4)}, {v(V_L + (kb & 1))}, {s(S_ST, 4)}, {s(S_SK + 2 * tt + (kb >> 1))} offen offset:{pr * 1024} sc1", f"S{tt}", first)


def v_store(tt, d, hf, src):
    return grp(f"buffer_store_dwordx4 {v(src, 4)}, {v(V_L + 2 + (d >> 1))}, {s(S_ST, 4)}, {s(S_SV + tt)} offen offset:{(d & 1) * 2048 + hf * 1024} sc1", f"S{tt}")


def attn_vinit():
    out = [f"v_mov_b32 {v(V_NINF)}, 0xff800000", f"v_mov_b32 {v(V_B)}, {v(V_L)}",
           [f"s_and_b32 s4, {s(S_XLAST)}, 0x8000", f"s_lshr_b32 s5, s4, 1", f"s_add_u32 s4, s4, {s(S_TP)}", "s_add_u32 s4, s4, 16384"],
           [f"s_add_u32 s5, s5, {XBASE}", f"s_cmp_lt_u32 {s(S_WAVE)}, 2", "s_cselect_b32 s4, s4, s5"],
           ["s_movk_i32 s5, 0x4000", f"s_cmp_lt_u32 {s(S_WAVE)}, 2", "s_cselect_b32 s5, 0x8000, s5"],
           f"v_add_u32 {v(V_XW)}, s4, {v(V_L)}", f"v_xor_b32 {v(V_XR)}, s5, {v(V_XW)}",
           f"s_add_u32 s4, {s(S_M0)}, {XBASE}", f"v_add_u32 {v(V_QW)}, s4, {v(V_L)}", f"v_xor_b32 {v(V_QR)}, 0x2000, {v(V_QW)}",
           [f"s_lshl_b32 s4, {s(S_WAVE)}, 9", f"s_add_u32 s4, s4, {s(S_TP)}"], f"v_lshrrev_b32 {v(V_XL)}, 2, {v(V_L)}", f"v_add_u32 {v(V_XL)}, s4, {v(V_XL)}"]
    for j in range(4):
        out += [[f"s_cmp_eq_u32 {s(S_BLK + 2)}, 0", f"s_cselect_b64 s[4:5], {s(S_MASK + 2 * j, 2)}, -1"],
                f"v_cndmask_b32_e64 {v(V_CM + j)}, {v(V_NINF)}, 0, s[4:5]"]
    out += [f"s_mov_b64 {s(S_BAD, 2)}, 0"]
    return out


def kf_addr(dst, tt):
    return [f"v_and_b32 {v(dst)}, 0x30, {v(V_L)}", [f"s_and_b32 s4, {s(S_OKF)}, 0xffffff80", f"s_add_u32 s4, s4, {64 * tt}"], f"v_add_u32 {v(dst)}, s4, {v(dst)}"]


def build_front(name):
    P = dict(mod=(14, 94), ln0=(140, 226), ln1=(250, 330), poll=300, hc=(358, 480), hpoll=800, s0=2, kpoll=4, tst=5, s1a=(1, 4), n1a=8)
    P.update(OPT.get('front', {}))
    ms = [kv_mfma(c, db, jb, kk) for c in range(8) for db in range(8) for jb in range(8) for kk in range(2)]
    for p in range(8):
        wb = A_V if p & 1 else A_K
        ms += [mfma(v(O(sl, db), 4), a(wb + db * 8 + kk * 4, 4), a(HP[p & 3] + sl * 8 + kk * 4, 4), "0" if p == 0 and kk == 0 else None)
               for sl in range(4) for db in range(8) for kk in range(2)]
    tl = Timeline("front", ms)
    ool = []
    DC = OPT.get('dc', 8)
    win = {0: (-28, -14), 1: (-24, 2), 2: (-16, 18), 3: (0, 34), 4: (16, 50), 5: (32, 66), 6: (48, 80), 7: (64, 90)}

    def dma_fill(groups, lo, hi, stream='d'):
        n = len(groups)
        for k, g in enumerate(groups):
            g = g if isinstance(g, list) else [g]
            tl.add(g, lo + (hi - lo) * k // (2 * n), lo + (hi - lo) * (k + 1) // n, stream, DC + 4 * (len(g) - 1))

    for c in range(8):
        B = 128 * c
        for db in range(8):
            if c == 0 and db < 2:
                continue
            lo, hi = win[db]
            for t in kvw_reads(c, db):
                tl.add(t, max(B + lo, 0), B + hi, 'w')
        if c < 7:
            for jb in range(8):
                for kk in range(2):
                    tl.add(c_read(c + 1, jb, kk), B + 112 + 2 * jb + kk, B + 114 + 2 * jb + kk, 'c')
        tl.cut(B + BG, *([need('C', 0, 0)] if c < 7 else [need('W', 0, 0)]), "s_barrier", *stamp(2 + c))
        if c < 6:
            dma_fill(chunk_dma(c + 2), B + BG, B + BG + 48)
        elif c == 6:
            dma_fill(sum((wq_dma(p) for p in range(4)), []), B + BG, B + BG + 48)
    tl.spread(mod_part1(), *P['mod'], 's', slack=10)
    pre, ld = wot_dma()
    tl.spread(pre, 4, 12, 'o')
    dma_fill(ld, 60, 90, 'o')
    tl.spread(mod_part2(), BG, BG + 36, 's')
    tl.spread(ln_row(0), *P['ln0'], 's')
    tl.add(f"buffer_load_dword {a(196)}, v4, {s(S_WQ, 4)}, {s(S_RE)} offen", 150, 200, 'o', DC)
    pre, st = wot_store()
    tl.spread(pre, 128 + BG, 128 + BG + 40, 'o')
    tl.spread(st, 128 + BG + 50, 128 + BG + 70, 'o', cost=DC)
    tl.spread([f"v_lshlrev_b32 v5, 1, {v(V_L)}", f"v_add_u32 v5, {SY_MODT:#x}, v5"] + gran_loads(), P['poll'], P['poll'] + 12, 'o')
    tl.spread(ln_row(1), *P['ln1'], 's')
    tl.spread(gran_cmp(), 256 + BG - 20, 256 + BG - 1, 's')
    g, back = check_site(f"{name}_mod")
    tl.cuts[256 + BG] = g + [back] + tl.cuts[256 + BG]
    ool.append(retry_loop(f"{name}_mod", gran_loads(), gran_cmp()))
    tl.spread(h_compute(), *P['hc'], 's')
    tl.spread(flag_store(S_SY, S_OHF, 22), 512 + BG, 512 + BG + 4, 's')
    hfa = [[f"s_lshl_b32 s4, {s(S_BLK)}, 4", f"s_add_u32 s4, s4, {SY_HF:#x}"], "v_mov_b32 v16, s4"]
    for k in range(1, 4):
        hfa += [[f"s_lshl_b32 s4, {s(S_BLK + k)}, 4", f"s_add_u32 s4, s4, {SY_HF:#x}"], f"v_writelane_b32 v16, s4, {k}"]
    hfl = [f"buffer_load_dwordx4 v[28:31], v16, {s(S_SY, 4)}, 0 offen sc1"]
    tl.spread(hfa + [f"v_add_u32 {v(V_L + 1 + k)}, {o}, {v(V_L)}" for k, o in enumerate((4096, 16384, 20480))], 660, 720, 's')
    tl.add(hfl[0], P['hpoll'], P['hpoll'] + 8, 's', DC)
    tl.spread(tag_cmp([28, 30]), 768 + BG - 8, 768 + BG - 1, 's')
    g, back = check_site(f"{name}_hf")
    tl.cuts[768 + BG] = g + [back] + tl.cuts[768 + BG]
    ool.append(retry_loop(f"{name}_hf", hfl, tag_cmp([28, 30])))
    dma_fill(sum((h_load(p, sl) for p in range(2) for sl in range(4)), []), 896 + 20, 896 + 96, 'h')
    B = 896
    s1 = []
    for pr in range(2):
        lo = B + 32 * pr + 32 + 3
        d0, d1 = 32 + 16 * pr, 64 + 16 * pr
        for jb in range(4):
            tl.spread(pack(d0 + 4 * jb, [acc(2 * pr, jb), acc(2 * pr + 1, jb)]), lo, B + 127, 'e', slack=INF)
            tl.add(k_store(0, jb, pr, d0 + 4 * jb, pr == 0 and jb == 0), lo, B + 127, 'e', DC)
        for jb in range(4):
            tl.spread(pack(d1 + 4 * jb, [acc(2 * pr, 4 + jb), acc(2 * pr + 1, 4 + jb)]), lo, B + 127, 'e', slack=INF)
            s1.append(k_store(1, jb, pr, d1 + 4 * jb, pr == 0 and jb == 0))
    for d in range(4):
        lo = B + 16 * (d + 5) + (4 if d == 1 else 3)
        hi = TQ + 34 if d >= 2 else B + 127
        for hf in range(2):
            tl.spread(pack(32 + 8 * d + 4 * hf, [acc(4 + d, 2 * hf), acc(4 + d, 2 * hf + 1)]), lo, hi, 'e', slack=INF)
            tl.add(v_store(0, d, hf, 32 + 8 * d + 4 * hf), lo, hi, 'e', DC)
        for hf in range(2):
            tl.spread(pack(96 + 8 * d + 4 * hf, [acc(4 + d, 4 + 2 * hf), acc(4 + d, 5 + 2 * hf)]), lo if d != 2 else TQ, hi, 'e', slack=INF)
            s1.append(v_store(1, d, hf, 96 + 8 * d + 4 * hf))
    wa = [f"v_xor_b32 {v(V_WA)}, {s(S_X1)}, {v(V_WA)}"] + [f"v_xor_b32 {v(V_WA + db)}, {db << 5}, {v(V_WA)}" for db in range(1, 8)]
    tl.spread(wa, B + 91, B + 99, 'w', slack=INF)
    for db in range(8):
        tl.spread(wq_read(0, db), B + BG, B + 127, 'w', slack=INF)
    entry = Sec("qentry").e(f"{name}_q:")
    tl.cut(TQ, *stamp(10), entry)
    for p in range(8):
        B = TQ + 64 * p
        if p < 7:
            order = [4, 5, 6, 7, 0, 1, 2, 3] if p == 0 else range(8)
            for n, db in enumerate(order):
                t = wq_read(p + 1, db)
                if p in (1, 3, 5):
                    t = [f"v_xor_b32 {v(V_WA + db)}, 0x10000, {v(V_WA + db)}"] + t
                lo = B + (n * 6 if p or n < 4 else 35)
                tl.spread(t, lo, B + (54 if p else 62), 'w', slack=INF)
        if p == 0:
            dma_fill(sum((h_load(q, sl) for q in (2, 3) for sl in range(4)), []), B, B + 40, 'h')
            tl.spread([f"s_add_u32 {s(S_HQ + k)}, {s(S_HQ + k)}, 8192" for k in range(4)], B + 40, B + 46, 'h', slack=INF)
        if p < 4:
            for sl in range(4):
                for t in h_load(p + 4, sl):
                    tl.add(t, max(B + 16 * sl + 15, TQ + 46), B + 63, 'h', DC)
        if p == 1:
            dma_fill(sum((wq_dma(q) for q in range(4, 8)), []), B, B + 40)
        if p == 3:
            tl.spread(attn_vinit(), B, B + 60, 'i')
        if p == P['kpoll']:
            kl = [f"buffer_load_dwordx4 v[36:39], v35, {s(S_SY, 4)}, 0 offen sc1"]
            tl.spread(kf_addr(35, 0) + kl, B, B + 12, 'i', slack=INF)
            tl.spread(tag_cmp([36, 38]), B + 56, B + 63, 'i', slack=INF)
            g, back = check_site(f"{name}_k0")
            tl.cut(B + 64, *g, back)
            ool.append(retry_loop(f"{name}_k0", kl, tag_cmp([36, 38])))
        if p == P['tst']:
            tl.add([f"s_mov_b32 {s(S_MA)}, {s(S_M0)}", f"s_mov_b32 {s(S_G)}, {s(S_M0)}"], B, B, 'd')
            for n in range(3):
                lo = B + 1 + 26 * n
                for f in dma8('T', (S_MA, n * 32768), V_L, [(lo + 3 * k, lo + 3 * k + 6) for k in range(8)], [f"s_add_u32 {s(S_G)}, {s(S_G)}, 32768"]):
                    tl.fl.append(f)
        if p == 7:
            ini = [f"v_mov_b32 {v(Sreg(1, 0) + k)}, {v(V_NINF)}" for k in range(16)] + [f"v_mov_b64 {v(Preg(0, 0) + 2 * k, 2)}, 0" for k in range(4)]
            ini += [f"v_mov_b64 {v(V_LS + 2 * k, 2)}, 0" for k in range(2)]
            ini += [[f"s_add_u32 {s(S_MB)}, {s(S_MA)}, 0x18000", f"s_min_u32 {s(S_CNT)}, {s(S_I)}, 6", f"s_sub_u32 {s(S_RE)}, {s(S_I)}, {s(S_CNT)}"]]
            ini += kf_addr(V_KFA, 1) + [f"v_lshlrev_b32 {v(V_HFA)}, 1, {v(V_L)}", f"v_add_u32 {v(V_HFA)}, {SY_HF:#x}, {v(V_HFA)}"]
            tl.spread(ini, B - 20, B + 20, 'i')
            for kb in range(4):
                for dc in range(4):
                    tl.add(kread(kb, dc, 0), B, B + 40, 'k')
            for sl in range(3):
                for dc, g in enumerate(q_finish(sl)):
                    for t in g:
                        tl.add(t, B + min(63, 16 * sl + 4 * dc + 10), INF, 'e')
        if p == P['s0']:
            tl.cut(B + 64, need(['W', 'S0'], [2, 0], 0), "s_barrier", *stamp(11))
            tl.spread(flag_store(S_SY, S_OKF, 32) + [f"s_add_u32 {s(S_OKF)}, {s(S_OKF)}, 64"], B + 64, B + 68, 'f', slack=INF)
        if p == 4:
            tl.cut(B + 64, need('W', 0, 0), "s_barrier", *stamp(12))
        if p == 6:
            tl.cut(B + 64, need('T', 2, 0), "s_barrier", *stamp(13))
    n1 = P['n1a']
    dma_fill(s1[:n1], TQ + 64 * P['s1a'][0], TQ + 64 * P['s1a'][1], 'st')
    lo = TQ + 64 * P['tst'] + 80
    dma_fill(s1[n1:], lo, lo + 26, 'st')
    secs = tl.build(fix_m0)
    sec = Sec("prestep")
    sec.e("s_waitcnt lgkmcnt(0)", "s_barrier")
    sec.ext(q_read(0, A_X) + q_read(1, A_X + 16))
    ms, fl = [], []
    order = [0, 1, 2, 4, 5, 3]
    for b in order:
        for dc in range(4):
            c = None if dc else (v(V_CM, 4) if b == 2 else "0")
            ms.append(mfma(v(V_S + 4 * b, 4) if b < 4 else v(V_PS + 4 * (b - 4), 4), a(A_K + dc * 4, 4), a(qsrc(b) + dc * 4, 4), c))
    for g in q_finish(3):
        fl += [F(t, 1, 18, 'e') for t in g]
    sec.ext(interleave(ms, fl))
    R = lambda b: V_S + 4 * b if b < 4 else V_PS + 4 * (b - 4)
    for b in order:
        sec.e(f"v_max3_f32 {v(R(b))}, {v(R(b))}, {v(R(b) + 1)}, {v(R(b) + 2)}")
    for b in order:
        sec.e(f"v_max_f32 {v(R(b))}, {v(R(b))}, {v(R(b) + 3)}")
    for sw in ("v_permlane16_swap_b32", "v_permlane32_swap_b32"):
        for b in order:
            sec.e(f"v_mov_b32 {v(R(b) + 1)}, {v(R(b))}")
        for b in order:
            sec.e(f"{sw} {v(R(b))}, {v(R(b) + 1)}")
        for b in order:
            sec.e(f"v_max_f32 {v(R(b))}, {v(R(b))}, {v(R(b) + 1)}")
    for b in order:
        for d in ([V_NM + b * 4 + j for j in range(4)] if b < 4 else [V_NP + b - 4]):
            sec.e(f"v_sub_f32 {v(d)}, 0, {v(R(b))}")
    sec.e(need('S1', 0), "s_barrier")
    sec.ext(flag_store(S_SY, S_OKF, 32))
    sec.e(f"s_cmp_lg_u32 {s(S_FB)}, 0", f"s_cbranch_scc1 {name}_slow")
    secs.append(sec)
    r = Sec("rerun")
    r.e(f"{name}_rerun:", "s_waitcnt vmcnt(0) lgkmcnt(0)", f"s_mov_b32 {s(S_ST + 2)}, 0", f"s_and_b32 {s(S_OKF)}, {s(S_OKF)}, 0xffffffbf",
        f"s_lshl_b32 {s(S_MB)}, {s(S_WAVE)}, 12")
    r.e(f"v_lshrrev_b32 v32, 8, {v(V_L)}", f"v_lshrrev_b32 v33, 4, {v(V_L)}", "v_and_b32 v33, 15, v33")
    r.ext(ow_offsets(32, 33, 34))
    for p in range(4):
        for g in wq_dma(p):
            r.ext(g)
    r.ext(hq_init())
    for p in range(2):
        for sl in range(4):
            r.ext(h_load(p, sl))
    r.ext(wa_base(32, 33, 34, V_WA))
    for db in range(1, 8):
        r.e(f"v_xor_b32 {v(V_WA + db)}, {db << 5}, {v(V_WA)}")
    r.e("s_waitcnt vmcnt(0)", "s_barrier")
    for db in range(8):
        r.ext(wq_read(0, db))
    r.e(f"s_branch {name}_q")
    return secs, secs.index(entry), ool, r
```

```python
from fcommon import *
from k_small import unpack, round_bf16
import f_attn as FA
from f_front import S_OCF

V_TID, V_L16, V_C, V_G = 0, 2, 3, 8
V_Q, V_RW, V_RR, V_XO, V_A0, V_A1 = 4, 9, 12, 13, 14, 15
V_X, V_GA, V_CB, V_SB, V_GB, V_WR = 16, 24, 40, 56, 72, 88
V_CF, V_SF, V_WF, V_GU, V_DN = 96, 104, 112, 116, 132
V_X1, V_U, V_T = 148, 164, 180
V_ACC = 192
V_GUF = 208
DNF = [24 + k for k in range(16)] + [240 + k for k in range(16)]
A_C, A_W = 0, 128

S_WS, S_SY, S_X, S_WRD, S_WG, S_WU, S_WD, S_OUT = 16, 20, 24, 28, 36, 40, 44, 56
S_WAVE, S_QT, S_NT, S_T0, S_T1 = 32, 33, 34, 52, 53
S_SW, S_RW, S_WB0, S_SC, S_RC, S_CB0 = 84, 85, 86, 87, 88, 89
S_GU = 8
S_CG, S_WB, S_CB, S_WT, S_XO = 60, 61, 62, 63, 64
NV = 11
L_BEST, L_ROW, L_GU, L_Y = 0, 64, 1024, 2048
SC = " sc1"


def acc(q, nb):
    return V_ACC + q * 16 + nb * 4


def wreg(st):
    return v(16 + 16 * st, 4), 16 + 16 * st


def wfrag(st, nb):
    return v(16 + 16 * st + 4 * nb, 4) if st < NV else a(A_W + ((st - NV) & 7) * 16 + 4 * nb, 4)


def next_head(st, r, base, dst):
    out = [f"s_add_u32 {s(r)}, {s(r)}, 0x4000", f"s_and_b32 {s(r)}, {s(r)}, 0x1ffff"] if st else []
    return out + [f"s_add_u32 {s(dst)}, {s(base)}, {s(r)}"]


def w_loads(st):
    out = next_head(st, S_RW, S_WB0, S_SW) if st & 3 == 0 else [f"s_add_u32 {s(S_SW)}, {s(S_SW)}, 0x1000"]
    return out + [f"buffer_load_dwordx4 {wfrag(st, nb)}, {v(V_L16)}, {s(S_WS, 4)}, {s(S_SW)} offen offset:{nb * 1024} sc1" for nb in range(4)]


def c_loads(st):
    out = next_head(st, S_RC, S_CB0, S_SC) if st & 3 == 0 else []
    return out + [f"buffer_load_dwordx4 {a(A_C + (st & 7) * 16 + q * 4, 4)}, {v(V_Q + q)}, {s(S_WS, 4)}, {s(S_SC)} offen offset:{(st & 3) * 1024} sc1"
                  for q in range(4)]


def small_loads():
    L = lambda n, d, vo, srd_, so, off: (f"buffer_load_dword{'x' + str(n) if n > 1 else ''} {v(d, n)}, {v(vo)}, {s(srd_, 4)}, {so} offen offset:{off}"
                                         + (SC if srd_ == S_SY else ""))
    out = [L(4, V_X + 4 * k, V_XO, S_X, s(S_XO), 64 * k) for k in range(2)]
    out.append(f"s_lshl_b32 {s(S_T0)}, {s(S_NT)}, 8")
    for dst, vec in ((V_GA, 2), (V_CB, 4), (V_SB, 3), (V_GB, 5)):
        out.append(f"s_add_u32 {s(S_T1)}, {s(S_T0)}, {SY_MOD + vec * 2048:#x}")
        out += [L(4, dst + 4 * k, V_A0, S_SY, s(S_T1), o) for k, o in enumerate((0, 16, 128, 144))]
    out.append(f"s_lshl_b32 {s(S_T0)}, {s(S_NT)}, 7")
    out += [L(4, V_WR + 4 * k, V_A1, S_WRD, s(S_T0), 64 * k) for k in range(2)]
    out += [f"v_lshlrev_b32 {v(V_T)}, 1, {v(V_L16)}", f"s_movk_i32 {s(S_T0)}, {SY_MOD + 0x2000:#x}", f"s_movk_i32 {s(S_T1)}, {SY_MOD + 0x1800:#x}"]
    out += [L(4, V_CF + 4 * k, V_T, S_SY, s(S_T0), 16 * k) for k in range(2)]
    out += [L(4, V_SF + 4 * k, V_T, S_SY, s(S_T1), 16 * k) for k in range(2)]
    out.append(L(4, V_WF, V_L16, S_WRD, "0", 0))
    out += [f"s_movk_i32 {s(S_T0)}, 7168", f"v_mul_lo_u32 {v(V_T + 1)}, {v(V_TID)}, {s(S_T0)}", f"s_lshl_b32 {s(S_T0)}, {s(S_CG)}, 4"]
    out += [L(4, V_GU + 8 * m + 4 * r, V_T + 1, (S_WG, S_WU)[m], s(S_T0), 3584 * r) for m in range(2) for r in range(2)]
    out += [f"v_and_b32 {v(V_T + 2)}, 127, {v(V_TID)}", f"v_lshlrev_b32 {v(V_T + 2)}, 3, {v(V_T + 2)}", f"s_lshl_b32 {s(S_T0)}, {s(S_CG)}, 13",
            f"s_add_u32 {s(S_T1)}, {s(S_T0)}, 4096"]
    out += [L(2, V_DN + 2 * r, V_T + 2, S_WD, s(S_T0 + (r >> 2)), (r & 3) * 1024) for r in range(8)]
    return out


def swap_red(sec, regs, op, sws=("v_permlane16_swap_b32", "v_permlane32_swap_b32"), t=None):
    t = V_T + 4 if t is None else t
    for sw in sws:
        for k, r in enumerate(regs):
            sec.e(f"v_mov_b32 {v(t + k)}, {v(r)}")
        sec.e("s_nop 1" if len(regs) < 2 else "s_nop 0")
        for k, r in enumerate(regs):
            sec.e(f"{sw} {v(r)}, {v(t + k)}")
        for k, r in enumerate(regs):
            sec.e(f"{op} {v(r)}, {v(r)}, {v(t + k)}")


def dpp_red(sec, regs, op):
    for ctl in ("quad_perm:[1,0,3,2]", "quad_perm:[2,3,0,1]", "row_half_mirror", "row_mirror"):
        if len(regs) < 3:
            sec.e(f"s_nop {2 - len(regs)}")
        for r in regs:
            sec.e(f"{op}_dpp {v(r)}, {v(r)}, {v(r)} {ctl} row_mask:0xf bank_mask:0xf")


def poll(name, loads, check):
    lp = Sec(name)
    lp.e(f"{name}:")
    lp.ext(loads)
    lp.e("s_waitcnt vmcnt(0)")
    lp.ext(check)
    lp.e("s_cmp_eq_u64 vcc, -1", f"s_cbranch_scc1 {name}_ok", f"s_sub_u32 {s(S_SPIN)}, {s(S_SPIN)}, 1", f"s_cbranch_scc0 {name}",
         f"s_mov_b32 {s(S_SPIN)}, 0", f"{name}_ok:")
    return lp


def build(name):
    P = dict(na=8, nb=5, nc=6, sm=12)
    P.update(OPT.get('out', {}))
    na, nb_, nc = P['na'], P['nb'], P['nc']
    assert na + nb_ + nc == NV + 8
    f = Sec("fin")
    f.e(f"{name}_fin:")
    f.ext(stamp(16))
    f.e(f"s_lshl_b32 s3, {s(S_QT)}, 1", f"s_add_u32 s3, s3, {s(S_NT)}", "s_and_b32 s3, s3, 7", f"s_lshl_b32 {s(S_RW)}, s3, 14", f"s_mov_b32 {s(S_RC)}, {s(S_RW)}",
        f"s_lshl_b32 s3, {s(S_WAVE)}, 17", f"s_lshl_b32 {s(S_WB0)}, {s(S_NT)}, 19", f"s_add_u32 {s(S_WB0)}, {s(S_WB0)}, s3",
        f"s_add_u32 {s(S_WB0)}, {s(S_WB0)}, {WS_WOT:#x}", f"s_lshl_b32 {s(S_CB0)}, {s(S_QT)}, 19", f"s_add_u32 {s(S_CB0)}, {s(S_CB0)}, s3",
        f"s_add_u32 {s(S_CB0)}, {s(S_CB0)}, {WS_CTX:#x}")
    f.e(f"s_cmp_lg_u64 {s(FA.S_BAD, 2)}, 0", "s_cselect_b32 s4, 1, 0", "v_mov_b32 v192, s4", f"s_lshl_b32 s4, {s(S_WAVE)}, 2",
        f"s_add_u32 s4, s4, {s(FA.S_TP)}", "v_mov_b32 v193, s4", f"v_mov_b32 v194, {s(FA.S_TP)}", "ds_write_b32 v193, v192 offset:32768")
    for st in range(na):
        f.ext(w_loads(st))
    f.e(need('X', 0, 0), "s_barrier", "ds_read_b128 v[196:199], v194 offset:32768", "s_waitcnt lgkmcnt(0)", "v_or3_b32 v196, v196, v197, v198",
        "v_or_b32 v196, v196, v199", "s_nop 0", "v_readfirstlane_b32 s4, v196", f"s_cmp_gt_u32 s4, {s(FA.S_FB)}", f"s_cbranch_scc1 {name}_again")
    ag = Sec("again")
    ag.e(f"{name}_again:", f"s_mov_b32 {s(FA.S_FB)}, 1", "s_barrier", f"s_branch {name}_rerun")
    p = Sec("opro")
    p.ext(flag_store(S_SY, S_OCF, 192))
    p.ext(stamp(17))
    p.e(f"s_load_dwordx2 s[66:67], s[0:1], {ARG['x']}", f"s_load_dwordx8 s[68:75], s[0:1], {ARG['wr']}", f"s_load_dwordx2 s[76:77], s[0:1], {ARG['out']}")
    for st in range(na, na + nb_):
        p.ext(w_loads(st))
    p.e(f"s_lshr_b32 s3, {s(S_QT)}, 1", "s_sub_u32 s4, 15, s3", "s_min_u32 s3, s3, s4", "s_lshl_b32 s3, s3, 8", f"s_lshl_b32 s4, {s(S_WAVE)}, 6",
        "s_add_u32 s3, s3, s4", f"s_add_u32 s3, s3, {SY_CF:#x}", f"v_and_b32 {v(V_A0)}, 0x30, {v(V_L16)}", f"v_add_u32 {v(V_A0)}, s3, {v(V_A0)}")
    cl = [f"buffer_load_dwordx4 v[192:195], {v(V_A0)}, {s(S_SY, 4)}, 0 offen sc1"]
    p.ext(cl)
    for st in range(na + nb_, na + nb_ + nc):
        p.ext(w_loads(st))
    p.e(f"v_lshrrev_b32 {v(V_TID)}, 24, {v(V_F)}", f"v_and_b32 {v(V_C)}, 15, {v(V_TID)}", f"v_lshrrev_b32 {v(V_G)}, 8, {v(V_L16)}")
    p.e("s_and_b32 s3, s2, 7", "s_lshr_b32 s4, s2, 3", "s_mul_i32 s3, s3, 28", f"s_add_u32 {s(S_CG)}, s3, s4", "s_cmp_lt_u32 s4, 28",
        f"s_cselect_b32 {s(S_CG)}, {s(S_CG)}, 0")
    for q in range(4):
        p.e(f"s_add_u32 s3, {s(S_WAVE)}, {q}", "s_and_b32 s3, s3, 3", "s_lshl_b32 s4, s3, 12", f"v_add_u32 {v(V_Q + q)}, s4, {v(V_L16)}")
        p.e("s_lshl_b32 s4, s3, 14", f"s_add_u32 s4, s4, {q * 4096}", f"v_add_u32 {v(V_RW + q - 1 if q else V_RR)}, s4, {v(V_L16)}")
    p.e("s_waitcnt lgkmcnt(0)")
    srd(p, S_X, 66, size=2 * MB)
    srd(p, S_WRD, 68, size=1024)
    srd(p, S_WG, 70, size=512 * 3584)
    srd(p, S_WU, 72, size=512 * 3584)
    srd(p, S_WD, 74, size=1792 * 1024)
    srd(p, S_OUT, 76, size=2 * MB)
    p.e(f"v_lshlrev_b32 {v(V_A1)}, 4, {v(V_G)}", f"v_lshl_add_u32 {v(V_XO)}, {v(V_C)}, 10, {v(V_A1)}")
    p.e(f"s_lshl_b32 {s(S_XO)}, {s(S_QT)}, 16", f"s_lshl_b32 s3, {s(S_WAVE)}, 14", f"s_add_u32 {s(S_XO)}, {s(S_XO)}, s3",
        f"s_lshl_b32 s3, {s(S_NT)}, 7", f"s_add_u32 {s(S_XO)}, {s(S_XO)}, s3")
    cm = tag_cmp([192, 194])
    p.ext(cm)
    g, back = check_site(f"{name}_cf")
    p.ext(g)
    rt = retry_loop(f"{name}_cf", cl, cm)
    back.ext(stamp(18))
    for st in range(8):
        back.ext(c_loads(st))
    back.e(f"v_lshlrev_b32 {v(V_A0)}, 5, {v(V_G)}")
    k = Sec("kloop")
    sm = small_loads()
    per = (len(sm) + 7) // 8
    for st in range(32):
        ms = [mfma(v(acc(q, nb), 4), wfrag(st, nb), a(A_C + (st & 7) * 16 + q * 4, 4), "0" if st == 0 else None)
              for q in (1, 2, 3, 0) for nb in range(4)]
        ld = (c_loads(st + 7) if 1 <= st < 25 else []) + (w_loads(st + 7) if NV + 8 <= st + 7 < 32 else [])
        if st >= P['sm']:
            ld += sm[(st - P['sm']) * per:(st - P['sm'] + 1) * per]
        k.ext(interleave(ms, [F(t, -1, 14, 'l') for t in ld]))
    k.ext(stamp(19))
    e = Sec("red")
    e.e("s_nop 1")
    for q in range(1, 4):
        for nb in range(4):
            e.e(f"ds_write_b128 {v(V_RW + q - 1)}, {v(acc(q, nb), 4)} offset:{nb * 1024}")
    e.e("s_waitcnt lgkmcnt(0)", "s_barrier")
    for q in range(1, 4):
        for nb in range(4):
            e.e(f"ds_read_b128 {v(acc(q, nb), 4)}, {v(V_RR)} offset:{q * 4096 + nb * 1024}")
    unpack(e, V_X1, V_X, 8)
    unpack(e, V_U, V_WR, 8)
    for j in range(8):
        r = V_CB + 2 * j
        e.e(f"v_add_f32 {v(r)}, 1.0, {v(r)}", f"v_add_f32 {v(r + 1)}, 1.0, {v(r + 1)}", f"v_cvt_pk_bf16_f32 {v(V_T)}, {v(r)}, {v(r + 1)}",
            f"v_lshlrev_b32 {v(r)}, 16, {v(V_T)}", f"v_and_b32 {v(r + 1)}, 0xffff0000, {v(V_T)}",
            f"v_pk_mul_f32 {v(V_U + 2 * j, 2)}, {v(V_U + 2 * j, 2)}, {v(r, 2)}")
    for q in range(1, 4):
        for j in range(8):
            e.e(f"v_pk_add_f32 {v(V_ACC + 2 * j, 2)}, {v(V_ACC + 2 * j, 2)}, {v(acc(q, 0) + 2 * j, 2)}")
    for j in range(8):
        e.e(f"v_pk_fma_f32 {v(V_X1 + 2 * j, 2)}, {v(V_ACC + 2 * j, 2)}, {v(V_GA + 2 * j, 2)}, {v(V_X1 + 2 * j, 2)}")
    for j in range(8):
        e.e(f"v_cvt_pk_bf16_f32 {v(V_X + j)}, {v(V_X1 + 2 * j)}, {v(V_X1 + 2 * j + 1)}")
    unpack(e, V_X1, V_X, 8)
    T = V_T
    e.e(f"v_pk_add_f32 {v(T + 4, 2)}, {v(V_X1, 2)}, {v(V_X1 + 2, 2)}", f"v_pk_mul_f32 {v(T + 6, 2)}, {v(V_X1, 2)}, {v(V_X1, 2)}",
        f"v_pk_mul_f32 {v(T + 8, 2)}, {v(V_X1, 2)}, {v(V_U, 2)}")
    for j in range(1, 8):
        x = v(V_X1 + 2 * j, 2)
        if j > 1:
            e.e(f"v_pk_add_f32 {v(T + 4, 2)}, {v(T + 4, 2)}, {x}")
        e.e(f"v_pk_fma_f32 {v(T + 6, 2)}, {x}, {x}, {v(T + 6, 2)}", f"v_pk_fma_f32 {v(T + 8, 2)}, {x}, {v(V_U + 2 * j, 2)}, {v(T + 8, 2)}")
    for n in range(3):
        e.e(f"v_add_f32 {v(T + n)}, {v(T + 4 + 2 * n)}, {v(T + 5 + 2 * n)}")
    swap_red(e, [T, T + 1, T + 2], "v_add_f32")
    e.e(f"v_mov_b32 {v(T + 3)}, {s(S_TAG)}", f"v_lshlrev_b32 {v(V_A0)}, 4, {v(V_C)}",
        f"s_lshl_b32 {s(S_T0)}, {s(S_QT)}, 13", f"s_lshl_b32 s3, {s(S_WAVE)}, 8", f"s_add_u32 {s(S_T0)}, {s(S_T0)}, s3",
        f"s_add_u32 {s(S_T0)}, {s(S_T0)}, {SY_STATS}", f"s_lshl_b32 s3, {s(S_NT)}, 10", f"s_add_u32 {s(S_T1)}, {s(S_T0)}, s3",
        "s_mov_b64 exec, 0xffff", f"buffer_store_dwordx4 {v(T, 4)}, {v(V_A0)}, {s(S_SY, 4)}, {s(S_T1)} offen{SC}", "s_mov_b64 exec, -1")
    e.e(f"v_lshl_add_u32 {v(V_A0)}, {v(V_G)}, 11, {v(V_A0)}")
    unpack(e, V_GUF, V_WF, 4)
    for j in range(4):
        r = V_CF + 2 * j
        e.e(f"v_add_f32 {v(r)}, 1.0, {v(r)}", f"v_add_f32 {v(r + 1)}, 1.0, {v(r + 1)}", f"v_cvt_pk_bf16_f32 {v(V_WF)}, {v(r)}, {v(r + 1)}",
            f"v_lshlrev_b32 {v(r)}, 16, {v(V_WF)}", f"v_and_b32 {v(r + 1)}, 0xffff0000, {v(V_WF)}")
    for base in (V_CF, V_SF):
        e.e(f"v_mul_f32 {v(base)}, {v(base)}, {v(V_GUF)}")
        for j in range(1, 8):
            e.e(f"v_fmac_f32 {v(base)}, {v(base + j)}, {v(V_GUF + j)}")
    dpp_red(e, [V_CF, V_SF], "v_add_f32")
    swap_red(e, [V_CF, V_SF], "v_add_f32", t=V_WF)
    unpack(e, V_GUF, V_GU, 16)
    for r in range(16):
        e.e(f"v_lshlrev_b32 {v(DNF[2 * r])}, 16, {v(V_DN + r)}", f"v_and_b32 {v(DNF[2 * r + 1])}, 0xffff0000, {v(V_DN + r)}")
    e.ext(stamp(20))
    h1 = poll(f"{name}_h1", [f"buffer_load_dwordx4 {v(T + 4 * n, 4)}, {v(V_A0)}, {s(S_SY, 4)}, {s(S_T0)} offen offset:{1024 * n}{SC}" for n in range(2)],
              [f"v_cmp_eq_u32 s[4:5], {s(S_TAG)}, {v(T + 3)}", f"v_cmp_eq_u32 vcc, {s(S_TAG)}, {v(T + 7)}", "s_and_b64 vcc, vcc, s[4:5]"])
    c = Sec("cand")
    c.ext(stamp(21))
    for n in range(3):
        c.e(f"v_add_f32 {v(T + n)}, {v(T + n)}, {v(T + 4 + n)}")
    swap_red(c, [T, T + 1, T + 2], "v_add_f32")
    MU, RS, R = T, T + 1, T + 2
    c.e(f"v_mul_f32 {v(MU)}, {f2u(1 / 512):#x}, {v(MU)}", f"v_mul_f32 {v(RS)}, {f2u(1 / 512):#x}, {v(RS)}",
        f"v_fma_f32 {v(RS)}, -{v(MU)}, {v(MU)}, {v(RS)}", f"v_max_f32 {v(RS)}, 0, {v(RS)}", f"v_add_f32 {v(RS)}, {f2u(1e-5):#x}, {v(RS)}",
        f"v_rsq_f32 {v(RS)}, {v(RS)}", f"v_fma_f32 {v(R)}, -{v(MU)}, {v(V_CF)}, {v(R)}", f"v_fma_f32 {v(R)}, {v(R)}, {v(RS)}, {v(V_SF)}",
        f"v_mov_b32 {v(T + 3)}, {v(R)}")
    dpp_red(c, [T + 3], "v_max_f32")
    c.e(f"v_cmp_eq_f32 vcc, {v(R)}, {v(T + 3)}", "s_ff1_i32_b64 s3, vcc", "s_max_i32 s3, s3, 0", f"v_mov_b32 {v(T + 4)}, {v(T + 3)}",
        f"v_mov_b32 {v(T + 5)}, s3", f"s_lshl_b32 s4, {s(S_WAVE)}, 3", f"v_mov_b32 {v(T + 6)}, s4",
        f"ds_write_b64 {v(T + 6)}, {v(T + 4, 2)} offset:{L_BEST}", f"v_mov_b32 {v(T + 6)}, 0")
    H = V_ACC
    c.e(f"v_mul_f32 {v(MU)}, -{v(MU)}, {v(RS)}")
    c.e("s_waitcnt lgkmcnt(0)", "s_barrier", f"ds_read_b128 {v(V_U, 4)}, {v(T + 6)} offset:{L_BEST}", f"ds_read_b128 {v(V_U + 4, 4)}, {v(T + 6)} offset:{L_BEST + 16}")
    for j in range(16):
        c.e(f"v_fma_f32 {v(H + j)}, {v(V_X1 + j)}, {v(RS)}, {v(MU)}")
    for j in range(8):
        c.e(f"v_pk_fma_f32 {v(H + 2 * j, 2)}, {v(H + 2 * j, 2)}, {v(V_CB + 2 * j, 2)}, {v(V_SB + 2 * j, 2)}")
    c.e(f"v_max_f32 {v(T + 3)}, {v(V_U)}, {v(V_U + 2)}", f"v_max3_f32 {v(T + 3)}, {v(T + 3)}, {v(V_U + 4)}, {v(V_U + 6)}",
        f"v_mov_b32 {v(T + 4)}, 3")
    for w in (2, 1, 0):
        c.e(f"v_cmp_eq_f32 vcc, {v(V_U + 2 * w)}, {v(T + 3)}", "s_nop 1", f"v_cndmask_b32 {v(V_U + 7)}, {v(V_U + 7)}, {v(V_U + 2 * w + 1)}, vcc",
            f"v_cndmask_b32_e64 {v(T + 4)}, {v(T + 4)}, {w}, vcc")
    c.e("s_nop 0", f"v_readfirstlane_b32 {s(S_WB)}, {v(T + 4)}", f"v_readfirstlane_b32 {s(S_CB)}, {v(V_U + 7)}")
    c.e(f"s_cmp_lg_u32 {s(S_WB)}, {s(S_WAVE)}", f"s_cbranch_scc1 {name}_nopub")
    pb = Sec("pub")
    pb.e(f"s_and_b32 s4, {s(S_TAG)}, 0xffff", f"s_lshr_b32 s5, {s(S_TAG)}, 16", "s_mov_b32 s6, 0xffff0000")
    for j in range(8):
        pb.e(f"v_cvt_pk_bf16_f32 {v(T + 8)}, {v(H + 2 * j)}, {v(H + 2 * j + 1)}", f"v_lshl_or_b32 {v(V_U + 2 * j)}, {v(T + 8)}, 16, s4",
             f"v_and_b32 {v(T + 8)}, s6, {v(T + 8)}", f"v_or_b32 {v(V_U + 2 * j + 1)}, s5, {v(T + 8)}")
    pb.e(f"s_lshl_b32 s3, {s(S_QT)}, 11", f"s_lshl_b32 s4, {s(S_NT)}, 8", "s_add_u32 s3, s3, s4", f"s_add_u32 s3, s3, {SY_SEG}",
         f"v_lshlrev_b32 {v(T + 8)}, 5, {v(V_G)}", f"v_cmp_eq_u32 vcc, {s(S_CB)}, {v(V_C)}",
         f"s_lshl_b32 s4, {s(S_WB)}, 4", f"s_add_u32 s4, s4, {s(S_CB)}", f"v_mov_b32 {v(T + 4)}, {v(T + 3)}", f"v_mov_b32 {v(T + 5)}, s4",
         f"v_mov_b32 {v(T + 6)}, {s(S_TAG)}", f"v_mov_b32 {v(T + 7)}, {s(S_TAG)}", "s_mov_b64 exec, vcc")
    for n, o in enumerate((0, 16, 128, 144)):
        pb.e(f"buffer_store_dwordx4 {v(V_U + 4 * n, 4)}, {v(T + 8)}, {s(S_SY, 4)}, s3 offen offset:{o}{SC}")
    for n, o in enumerate((0, 16, 128, 144)):
        pb.e(f"ds_write_b128 {v(T + 8)}, {v(V_X1 + 4 * n, 4)} offset:{L_ROW + o}", f"ds_write_b128 {v(T + 8)}, {v(V_U + 4 * n, 4)} offset:{L_ROW + 256 + o}")
    pb.e(f"s_lshl_b32 s3, {s(S_QT)}, 4", f"s_add_u32 s3, s3, {SY_HDR}", f"s_cmp_eq_u32 {s(S_NT)}, 0", "s_cselect_b64 exec, 1, 0",
         f"v_mov_b32 {v(T + 9)}, 0", "s_nop 0", f"s_cbranch_scc0 {name}_nohdr",
         f"buffer_store_dwordx4 {v(T + 4, 4)}, {v(T + 9)}, {s(S_SY, 4)}, s3 offen{SC}", f"{name}_nohdr:", "s_mov_b64 exec, -1")
    o = Sec("outv")
    o.e(f"{name}_nopub:")
    for j in range(8):
        o.e(f"v_pk_fma_f32 {v(H + 2 * j, 2)}, {v(H + 2 * j, 2)}, {v(V_GB + 2 * j, 2)}, {v(V_X1 + 2 * j, 2)}")
    for j in range(8):
        o.e(f"v_cvt_pk_bf16_f32 {v(V_X + j)}, {v(H + 2 * j)}, {v(H + 2 * j + 1)}")
    o.e(f"v_and_b32 {v(V_A0)}, 0x1f0, {v(V_L16)}", f"s_movk_i32 {s(S_T0)}, {SY_HDR:#x}")
    o.ext(stamp(22))
    h2 = poll(f"{name}_h2", [f"buffer_load_dwordx4 {v(T, 4)}, {v(V_A0)}, {s(S_SY, 4)}, {s(S_T0)} offen{SC}"],
              [f"v_cmp_eq_u32 vcc, {s(S_TAG)}, {v(T + 2)}"])
    g = Sec("win")
    g.e(f"v_mov_b32 {v(T + 3)}, {v(T)}")
    dpp_red(g, [T + 3], "v_max_f32")
    swap_red(g, [T + 3], "v_max_f32", sws=("v_permlane16_swap_b32",))
    g.e(f"v_cmp_eq_f32 vcc, {v(T)}, {v(T + 3)}", f"s_ff1_i32_b64 {s(S_WT)}, vcc", f"s_max_i32 {s(S_WT)}, {s(S_WT)}, 0",
        f"s_lshl_b32 {s(S_T0)}, {s(S_WT)}, 11", f"s_add_u32 {s(S_T0)}, {s(S_T0)}, {SY_SEG}", f"v_lshlrev_b32 {v(V_A0)}, 3, {v(V_TID)}",
        "s_mov_b32 s6, 0xffff", "s_lshr_b32 s3, s2, 3", "s_cmp_ge_u32 s3, 28", f"s_cbranch_scc1 {name}_nomlp")
    h3 = poll(f"{name}_h3", [f"buffer_load_dwordx2 {v(T + 4, 2)}, {v(V_A0)}, {s(S_SY, 4)}, {s(S_T0)} offen{SC}"],
              [f"v_and_b32 {v(T + 6)}, s6, {v(T + 4)}", f"v_lshl_or_b32 {v(T + 6)}, {v(T + 5)}, 16, {v(T + 6)}", f"v_cmp_eq_u32 vcc, {s(S_TAG)}, {v(T + 6)}"])
    m = Sec("mlp")
    m.ext(stamp(23))
    m.e(f"v_and_b32 {v(T + 4)}, 0xffff0000, {v(T + 4)}", f"v_and_b32 {v(T + 6)}, 0xffff0000, {v(T + 5)}")
    for mm in range(2):
        for j in range(4):
            d = v(V_U + 8 * mm + 2 * j, 2)
            m.e(f"v_pk_mul_f32 {d}, {v(V_GUF + 16 * mm + 2 * j, 2)}, {v(T + 4, 2)} op_sel_hi:[1,0]")
    for mm in range(2):
        for j in range(4):
            d = v(V_U + 8 * mm + 2 * j, 2)
            m.e(f"v_pk_fma_f32 {d}, {v(V_GUF + 16 * mm + 8 + 2 * j, 2)}, {v(T + 6, 2)}, {d} op_sel_hi:[1,0,1]")
    for sw, n in (("v_permlane32_swap_b32", 8), ("v_permlane16_swap_b32", 4)):
        m.e("s_nop 0")
        for j in range(n):
            m.e(f"{sw} {v(V_U + j)}, {v(V_U + n + j)}")
        for j in range(n):
            m.e(f"v_add_f32 {v(V_U + j)}, {v(V_U + j)}, {v(V_U + n + j)}")
    dpp_red(m, [V_U + j for j in range(4)], "v_add_f32")
    m.e(f"s_lshl_b32 s3, {s(S_WAVE)}, 6", f"v_add_u32 {v(T + 8)}, s3, {v(V_A1)}", f"ds_write_b128 {v(T + 8)}, {v(V_U, 4)} offset:{L_GU}",
        f"v_lshrrev_b32 {v(T + 8)}, 2, {v(V_L16)}", "s_waitcnt lgkmcnt(0)", "s_barrier", f"ds_read_b32 {v(V_U)}, {v(T + 8)} offset:{L_GU}",
        "s_waitcnt lgkmcnt(0)")
    swap_red(m, [V_U], "v_add_f32")
    round_bf16(m, V_U, V_U + 1)
    m.e(f"v_mul_f32 {v(V_U + 1)}, {f2u(-LOG2E):#x}, {v(V_U)}", f"v_exp_f32 {v(V_U + 1)}, {v(V_U + 1)}",
        f"v_mov_b32_dpp {v(V_U + 2)}, {v(V_U)} row_ror:8 row_mask:0xf bank_mask:0xf", f"v_add_f32 {v(V_U + 1)}, 1.0, {v(V_U + 1)}",
        f"v_rcp_f32 {v(V_U + 1)}, {v(V_U + 1)}", "s_nop 0", f"v_mul_f32 {v(V_U)}, {v(V_U)}, {v(V_U + 1)}")
    round_bf16(m, V_U, V_U + 1)
    m.e(f"v_mul_f32 {v(V_U)}, {v(V_U)}, {v(V_U + 2)}")
    round_bf16(m, V_U, V_U + 1)
    m.e("s_nop 0")
    for r in range(8):
        m.e(f"v_readlane_b32 {s(S_GU + r)}, {v(V_U)}, {r}")
    m.e(f"s_cmp_ge_u32 {s(S_WAVE)}, 2", f"s_cbranch_scc1 {name}_nomlp")
    dn = Sec("down")
    for j in range(4):
        dn.e(f"v_mul_f32 {v(V_U + j)}, {s(S_GU)}, {v(DNF[j])}")
    for r in range(1, 8):
        for j in range(4):
            dn.e(f"v_fmac_f32 {v(V_U + j)}, {s(S_GU + r)}, {v(DNF[4 * r + j])}")
    dn.e("s_movk_i32 s6, 0xff", f"v_lshlrev_b32 {v(T + 8)}, 4, {v(V_TID)}", f"s_lshl_b32 s3, {s(S_CG)}, 11", f"s_add_u32 s3, s3, {SY_PART}")
    for j in range(4):
        dn.e(f"s_lshr_b32 s4, {s(S_TAG)}, {8 * j}", f"v_mov_b32 {v(T + 9)}, s4", f"v_bfi_b32 {v(V_U + j)}, s6, {v(T + 9)}, {v(V_U + j)}")
    dn.e(f"buffer_store_dwordx4 {v(V_U, 4)}, {v(T + 8)}, {s(S_SY, 4)}, s3 offen{SC}")
    z = Sec("fin")
    z.e(f"{name}_nomlp:")
    z.ext(stamp(24))
    z.e(f"s_cmp_eq_u32 {s(S_WT)}, {s(S_QT)}", f"s_cbranch_scc1 {name}_winner")
    st_out = [f"buffer_store_dwordx4 {v(V_X + 4 * n, 4)}, {v(V_XO)}, {s(S_OUT, 4)}, {s(S_XO)} offen offset:{64 * n}" for n in range(2)]
    z.ext(st_out)
    z.ext(stamp(25))
    z.ext(stamp_out(S_WS, S_WAVE, V_L16, T))
    z.e("s_endpgm")
    w0 = Sec("w0")
    w0.e(f"{name}_winner:")
    w0.e(f"v_lshrrev_b32 {v(T + 8)}, 4, {v(V_TID)}", f"v_lshlrev_b32 {v(T + 8)}, 11, {v(T + 8)}", f"v_lshl_add_u32 {v(V_A0)}, {v(V_C)}, 4, {v(T + 8)}",
         f"s_lshl_b32 s3, {s(S_NT)}, 8", f"s_add_u32 s3, s3, {SY_PART}", "s_mov_b32 s6, 0x0c0c0400", "s_mov_b32 s7, 0x05040100")
    PR = list(range(V_GUF, V_GUF + 48, 4)) + [V_GA, V_GA + 4]
    loads, chk = [], ["s_mov_b64 vcc, -1"]
    for n in range(14):
        loads += [f"s_add_u32 s4, s3, {n * 32768}", f"buffer_load_dwordx4 {v(PR[n], 4)}, {v(V_A0)}, {s(S_SY, 4)}, s4 offen{SC}"]
        chk += [f"v_perm_b32 {v(T + 8)}, {v(PR[n] + 1)}, {v(PR[n])}, s6", f"v_perm_b32 {v(T + 9)}, {v(PR[n] + 3)}, {v(PR[n] + 2)}, s6",
                f"v_perm_b32 {v(T + 8)}, {v(T + 9)}, {v(T + 8)}, s7", f"v_cmp_eq_u32 s[4:5], {s(S_TAG)}, {v(T + 8)}", "s_and_b64 vcc, vcc, s[4:5]"]
    h4 = poll(f"{name}_h4", loads, chk)
    y = Sec("y")
    for n in range(1, 14):
        for j in range(2):
            y.e(f"v_pk_add_f32 {v(PR[0] + 2 * j, 2)}, {v(PR[0] + 2 * j, 2)}, {v(PR[n] + 2 * j, 2)}")
    Y = PR[0]
    swap_red(y, [Y + j for j in range(4)], "v_add_f32")
    y.e(f"v_lshlrev_b32 {v(V_A0)}, 4, {v(V_C)}", f"s_lshl_b32 s3, {s(S_WAVE)}, 8", f"v_add_u32 {v(T + 8)}, s3, {v(V_A0)}",
        f"ds_write_b128 {v(T + 8)}, {v(Y, 4)} offset:{L_Y}")
    y.e(f"s_lshl_b32 s4, {s(S_NT)}, 8", f"s_add_u32 s4, s4, {SY_MOD + 5 * 2048:#x}", f"buffer_load_dwordx4 {v(Y + 24, 4)}, {v(V_A0)}, {s(S_SY, 4)}, s4 offen{SC}")
    y.e(f"v_cmp_ne_u32 vcc, {s(S_CB)}, {v(V_C)}", f"s_cmp_eq_u32 {s(S_WB)}, {s(S_WAVE)}", "s_cselect_b64 exec, vcc, -1")
    y.ext(st_out)
    y.e("s_mov_b64 exec, -1", "s_waitcnt lgkmcnt(0)", "s_barrier", f"s_cmp_lg_u32 {s(S_WAVE)}, 0", f"s_cbranch_scc1 {name}_done")
    u = Sec("upd")
    for n in range(4):
        u.e(f"ds_read_b128 {v(Y + 4 * n, 4)}, {v(V_A0)} offset:{L_Y + 256 * n}")
    u.e(f"ds_read_b128 {v(Y + 16, 4)}, {v(V_A0)} offset:{L_ROW}", f"ds_read_b128 {v(Y + 20, 4)}, {v(V_A0)} offset:{L_ROW + 256}")
    SG = T + 3
    round_bf16(u, SG, T + 8)
    u.e(f"v_mul_f32 {v(SG)}, {f2u(-LOG2E):#x}, {v(SG)}", f"v_exp_f32 {v(SG)}, {v(SG)}", "s_nop 0", f"v_add_f32 {v(SG)}, 1.0, {v(SG)}",
        f"v_rcp_f32 {v(SG)}, {v(SG)}", "s_nop 0")
    round_bf16(u, SG, T + 8)
    for j in range(4):
        r = Y + j
        u.e(f"v_add_f32 {v(r)}, {v(r)}, {v(r + 4)}", f"v_add_f32 {v(r + 8)}, {v(r + 8)}, {v(r + 12)}", f"v_add_f32 {v(r)}, {v(r)}, {v(r + 8)}")
        round_bf16(u, r, T + 8)
        u.e(f"v_mul_f32 {v(r)}, {v(r)}, {v(SG)}")
        round_bf16(u, r, T + 8)
        u.e(f"v_and_b32 {v(r + 20)}, 0xffff0000, {v(r + 20)}", f"v_add_f32 {v(r)}, {v(r)}, {v(r + 20)}")
        round_bf16(u, r, T + 8)
        u.e(f"v_fma_f32 {v(r)}, {v(r)}, {v(r + 24)}, {v(r + 16)}")
    u.e(f"v_cvt_pk_bf16_f32 {v(T + 8)}, {v(Y)}, {v(Y + 1)}", f"v_cvt_pk_bf16_f32 {v(T + 9)}, {v(Y + 2)}, {v(Y + 3)}",
        f"v_lshlrev_b32 {v(V_A0)}, 3, {v(V_C)}", f"s_lshl_b32 s3, {s(S_WB)}, 4", f"s_add_u32 s3, s3, {s(S_CB)}", "s_lshl_b32 s3, s3, 10",
        f"s_add_u32 s3, s3, {s(S_XO)}", "s_mov_b64 exec, 0xffff", f"buffer_store_dwordx2 {v(T + 8, 2)}, {v(V_A0)}, {s(S_OUT, 4)}, s3 offen",
        f"v_mov_b32 {v(T + 10)}, {s(S_TAG)}", f"v_mov_b32 {v(T + 11)}, 0", f"s_cmp_eq_u32 {s(S_NT)}, 0", f"s_cbranch_scc0 {name}_done",
        "s_mov_b64 exec, 1", f"buffer_store_dword {v(T + 10)}, {v(T + 11)}, {s(S_SY, 4)}, 0 offen offset:{SY_EPOCH}")
    d = Sec("done")
    d.e(f"{name}_done:", "s_mov_b64 exec, -1")
    d.ext(stamp(25))
    d.ext(stamp_out(S_WS, S_WAVE, V_L16, T))
    d.e("s_endpgm")
    secs = [f, p, back, k, e, h1, c, pb, o, h2, g, h3, m, dn, z, w0, h4, y, u, d, ag, rt]
    h = [f, p, back, k, e]
    tails = [h + [h1, c, pb, o, h2, g, h3, m, dn, z], h + [h1, c, o, h2, g, z], [f, p, rt, rt, back, k, e, h1, h1, c, pb, o, h2, h2, g, h3, h3, m, dn, w0, h4, h4, y, u, d],
             h + [h1, c, o, h2, g, w0, h4, y, d], h + [h1, c, o, h2, g, h3, m, w0, h4, y, d]]
    return secs, tails, [f, ag]
```

```python
from common import *

SY_EPOCH, SY_HDR, SY_MODT, SY_MOD, SY_HF, SY_KF, SY_CF = 0x0, 0x1000, 0x2000, 0x5000, 0x8000, 0x9000, 0xA000
SY_SEG, SY_STATS, SY_PART, SY_SIZE = 0x10000, 0x20000, 0x80000, 0x100000
WS_SIZE = 0x3E00000
S_TAG, S_SPIN, S_RE = 80, 82, 83
S_STP = 92
V_STP = 1
V_F = 0


def stamp(k):
    if not OPT['stamp']:
        return []
    return [f"s_memrealtime {s(S_STP, 2)}", f"s_memtime {s(S_STP + 2, 2)}", "s_waitcnt lgkmcnt(0)",
            f"v_writelane_b32 {v(V_STP)}, {s(S_STP)}, {2 * k}", f"v_writelane_b32 {v(V_STP)}, {s(S_STP + 2)}, {2 * k + 1}"]


def stamp_out(s_ws, s_wave, v_l16, t):
    if not OPT['stamp']:
        return []
    return ["s_mov_b64 exec, -1", "s_lshl_b32 s3, s2, 2", f"s_add_u32 s3, s3, {s(s_wave)}", "s_lshl_b32 s3, s3, 8", f"s_add_u32 s3, s3, {WS_STAMP:#x}",
            f"v_lshrrev_b32 {v(t)}, 2, {v(v_l16)}", f"buffer_store_dword {v(V_STP)}, {v(t)}, {s(s_ws, 4)}, s3 offen"]


def tag_cmp(regs, dst=4):
    out = [f"v_cmp_eq_u64_e64 {s(dst, 2)}, {s(S_TAG, 2)}, {v(regs[0], 2)}"]
    for r in regs[1:]:
        out += [f"v_cmp_eq_u64 vcc, {s(S_TAG, 2)}, {v(r, 2)}", f"s_and_b64 {s(dst, 2)}, {s(dst, 2)}, vcc"]
    return out


def check_site(name, dst=4):
    return [f"s_cmp_eq_u64 {s(dst, 2)}, -1", f"s_cbranch_scc0 {name}_retry"], Sec(name).e(f"{name}_back:")


def retry_loop(name, loads, cmps, dst=4):
    sec = Sec(name + "_retry")
    sec.e(f"{name}_retry:")
    sec.ext(loads)
    sec.e("s_waitcnt vmcnt(0)")
    sec.ext(cmps)
    sec.e(f"s_cmp_eq_u64 {s(dst, 2)}, -1", f"s_cbranch_scc1 {name}_back", f"s_sub_u32 {s(S_SPIN)}, {s(S_SPIN)}, 1",
          f"s_cbranch_scc0 {name}_retry", f"s_mov_b32 {s(S_SPIN)}, 0", f"s_branch {name}_back")
    return sec


def flag_store(s_sy, s_off, t):
    return [f"v_mov_b32 {v(t)}, {s(S_TAG)}", f"v_mov_b32 {v(t + 1)}, {s(S_TAG + 1)}",
            f"buffer_store_dwordx2 {v(t, 2)}, {v(V_F)}, {s(s_sy, 4)}, {s(s_off)} offen sc1"]
```

```python
from fcommon import *
import f_attn as FA, f_front as FF, f_out as FO
from f_attn import *


def build(name):
    p = FF.prologue(name)
    front, qi, ool, rerun = FF.build_front(name)
    g2 = Sec("go2")
    g2.e(f"{name}_go2:")
    g2.ext(stamp(14))
    g2.e(f"s_cmp_eq_u32 {s(S_CNT)}, 0", f"s_cbranch_scc1 {name}_d1")
    l1 = Sec("l1").e(f"{name}_p1:")
    p1 = build_p1(name)
    ca = Sec("chka")
    cm = tag_cmp([V_KF, V_KF + 2])
    ca.ext(cm)
    g, cb = check_site(f"{name}_ka")
    ca.ext(g)
    cb.e(f"s_mov_b32 {s(S_CNT)}, {s(S_RE)}", f"s_mov_b32 {s(S_RE)}, 0", f"s_cmp_lg_u32 {s(S_CNT)}, 0", f"s_cbranch_scc1 {name}_p1")
    ra = retry_loop(f"{name}_ka", kf_load(), cm)
    dsp = Sec("dsp1")
    dsp.e(f"{name}_d1:")
    dsp.ext(stamp(15))
    dsp.e(f"s_lshl_b32 {s(S_T0)}, {s(S_I)}, 1", f"s_sub_u32 {s(S_T0)}, 14, {s(S_T0)}", f"s_cmp_eq_u32 {s(S_T0)}, 0",
          f"s_cselect_b32 {s(S_X1)}, 0x10000, {s(S_XLAST)}",
          f"s_lshr_b32 {s(S_T1)}, {s(S_WAVE)}, 1", f"s_lshl_b32 {s(S_T1)}, {s(S_T1)}, 14", f"s_add_u32 {s(S_MA)}, {s(S_MA)}, {s(S_T1)}",
          f"s_add_u32 {s(S_T1)}, {s(S_T1)}, 32768")
    for w in range(1, 4):
        dsp.e(f"s_cmp_eq_u32 {s(S_WAVE)}, {w}", f"s_cbranch_scc1 {name}_d1_{w}")
    d1 = [build_d1(name, w) for w in range(4)]
    l2 = Sec("l2").e(f"{name}_p2:")
    p2 = build_p2(name)
    dsp2 = Sec("dsp2")
    for w in range(1, 4):
        dsp2.e(f"s_cmp_eq_u32 {s(S_WAVE)}, {w}", f"s_cbranch_scc1 {name}_d2_{w}")
    d2 = [build_d2(name, w) for w in range(4)]
    s0, s1, s2, s3 = build_slow(name)
    osecs, tails, again = FO.build(name)
    end = Sec("end").e(f"{name}_codeend:")
    secs = ([p] + front + [g2, l1, p1, ca, cb, dsp] + sum(([d[0], d[1]] for d in d1), []) + [l2, p2, dsp2] + d2 + osecs
            + ool + [ra] + [d[2] for d in d1] + [rerun, s0, s1, s2, s3, end])
    head = [p] + front + [g2]
    paths = []
    for w in range(4):
        for n, (n1, n2) in enumerate(((2, 2), (0, 2), (1, 0))):
            paths.append(head + [p1] * n1 + ([ca, cb] if n1 else []) + [dsp, d1[w][0], d1[w][1]] + [p2] * n2 + ([dsp2] if n2 else []) + [d2[w]] + tails[(3 * w + n) % len(tails)])
    paths.append(head + [p1, ca, cb, p1, ca, ra, cb, dsp, d1[0][0], d1[0][2], d1[0][1], d2[0]] + tails[0])
    paths.append([p] + front + [s3, s0, s1, s1, s2, g2, p1, ca, cb, dsp, d1[0][0], d1[0][1], p2, p2, dsp2, d2[0]] + again + [rerun] + front[qi:] + [s3, s0, s1, s2, g2, p1])
    for o in ool:
        k = [n for n, x in enumerate(front) if x.name + "_retry" == o.name][0]
        paths.append([p] + front[:k] + [o, o] + front[k:])
    resolve_needs(paths)
    insert_waits(paths)
    nops = fix_hazards(paths)
    errs = []
    for pa in paths:
        errs += check_hazards(pa, name) + check_scc(pa)
    if OPT.get('verbose'):
        print("nops", nops, "sched", [(n, c - 16 * n) for n, _, c in STATS if c > 16 * n])
    return secs, sorted(set(errs)), dict(vgpr=512, accum=256, grid=256, block=256, lds=163840, sgpr=102)
```

```python
from build import *
import k_all, sys
NAME = "adaLN_cond__compressed_kv_cla__moe_arch_mod__prompt_kernel"
OPT.update(verbose=1)
if len(sys.argv) > 2:
    OPT.update(eval(sys.argv[2]))
txt = assemble([(NAME, k_all.build)])
txt = txt.replace(f"; @launch kernel={NAME} ", "; @launch ").replace(NAME + "_", "L_")
txt = txt.replace(f".type {NAME},@function", f".globl {NAME}\n.type {NAME},@function")
open(sys.argv[1], 'w').write(txt)
```
